```python
import torch

def _softmax(x, axis=-1):
    return torch.softmax(x, dim=axis)
def _gelu(x):
    return torch.nn.functional.gelu(x, approximate="tanh")
def _silu(x):
    return torch.nn.functional.silu(x)
def _sigmoid(x):
    return torch.sigmoid(x)
def _layernorm(x, axis=-1, eps=1e-5):
    m = x.mean(dim=axis, keepdim=True)
    v = x.var(dim=axis, keepdim=True, unbiased=False)
    return (x - m) / torch.sqrt(v + eps)
def _scatter_add(tgt, idx, src, axis=0):
    return tgt.clone().index_add_(axis, idx, src)
def _segment_sum(src, seg, n):
    out = torch.zeros((n,) + src.shape[1:], dtype=src.dtype)
    return out.index_add_(0, seg, src)
def _pad(x, pw):
    flat = tuple(v for pair in reversed(pw) for v in pair)
    return torch.nn.functional.pad(x, flat)

kernel_name = 'standalone__swiglu_ffn__prompt'

def setup_inputs():

    _w = (lambda a: (lambda t: t.to(torch.bfloat16) if t.is_floating_point() else t)(torch.as_tensor(a)))
    B, S, D, F = 1, 2048, 512, 1376
    return {
        "x": _w((lambda *s: torch.randn(*s, dtype=torch.bfloat16) * 0.05)(B, S, D)),
        "w_gate": _w((lambda *s: torch.randn(*s, dtype=torch.bfloat16) * 0.05)(D, F)),
        "w_up": _w((lambda *s: torch.randn(*s, dtype=torch.bfloat16) * 0.05)(D, F)),
        "w_down": _w((lambda *s: torch.randn(*s, dtype=torch.bfloat16) * 0.05)(F, D)),
    }

def reference(x, w_gate, w_up, w_down):
    g = _silu(x @ w_gate)
    u = x @ w_up
    return (g * u) @ w_down
```

```python
import sys

M, D, F = 2048, 512, 1376
KB16 = F // 16
H_BYTES = (M // 32) * KB16 * 1024
X_BYTES = M * D * 2
W_BYTES = D * F * 2
OUT_BYTES = M * D * 2


class Asm:
    def __init__(self):
        self.lines = []
        self.vm = []
        self.lg = []

    def __call__(self, s):
        self.lines.append("    " + s)

    def label(self, l):
        self.lines.append(l + ":")

    def comment(self, s):
        self.lines.append("    ; " + s)

    def vmem(self, s, tag):
        self(s)
        self.vm.append(tag)
        assert len(self.vm) <= 63, "too many vmem outstanding"

    def lds(self, s, tag):
        self(s)
        self.lg.append(tag)

    def _need(self, q, tags):
        idx = -1
        for i, t in enumerate(q):
            if t in tags:
                idx = i
        if idx < 0:
            return None
        return len(q) - 1 - idx

    def wait(self, vm=(), lg=(), vm_all=False, lg_all=False):
        parts = []
        if vm_all:
            if self.vm:
                parts.append("vmcnt(0)")
                self.vm = []
        else:
            n = self._need(self.vm, set(vm))
            if n is not None:
                parts.append("vmcnt(%d)" % n)
                self.vm = self.vm[len(self.vm) - n:] if n else []
        if lg_all:
            if self.lg:
                parts.append("lgkmcnt(0)")
                self.lg = []
        else:
            n = self._need(self.lg, set(lg))
            if n is not None:
                n = min(n, 15)
                parts.append("lgkmcnt(%d)" % n)
                self.lg = self.lg[len(self.lg) - n:] if n else []
        if parts:
            self("s_waitcnt " + " ".join(parts))

    def text(self):
        return "\n".join(self.lines) + "\n"


def vr(a, n):
    return "v[%d:%d]" % (a, a + n - 1)


def srd(a, base, sz):
    a("s_mov_b32 s%d, s%d" % (base[0], base[1]))
    a("s_and_b32 s%d, s%d, 0xffff" % (base[0] + 1, base[1] + 1))
    a("s_mov_b32 s%d, %d" % (base[0] + 2, sz))
    a("s_mov_b32 s%d, 0x00020000" % (base[0] + 3))


def gen_k1():
    a = Asm()
    STG = 40960
    NST = 8
    ACC = 128
    def acc(mbk, fbk):
        return ACC + (mbk * 3 + fbk) * 16
    FR = [32, 52]
    vXo = 8
    vWgo = 12
    vWuo = 15
    vXa = [72, 88]
    vWa = [76, 92]

    a.label("ffn1_kernel")
    a("s_cmp_ge_u32 s2, 256")
    a("s_cbranch_scc1 L1_end")
    a("s_load_dwordx4 s[4:7], s[0:1], 0")
    a("s_load_dwordx2 s[8:9], s[0:1], 16")
    a("s_load_dwordx2 s[10:11], s[0:1], 48")
    a("s_and_b32 s36, s2, 7")
    a("s_lshr_b32 s37, s2, 3")
    a("s_and_b32 s28, s36, 1")
    a("s_lshl_b32 s28, s28, 3")
    a("s_and_b32 s38, s37, 7")
    a("s_add_u32 s28, s28, s38")
    a("s_lshr_b32 s29, s36, 1")
    a("s_lshl_b32 s29, s29, 2")
    a("s_lshr_b32 s38, s37, 3")
    a("s_add_u32 s29, s29, s38")
    a("s_cmp_ge_u32 s29, 15")
    a("s_cbranch_scc1 L1_end")
    a("v_lshrrev_b32 v2, 6, v0")
    a("v_and_b32 v1, 63, v0")
    a("s_nop 0")
    a("v_readfirstlane_b32 s30, v2")
    a("v_lshrrev_b32 v3, 3, v1")
    a("v_and_b32 v4, 7, v1")
    a("v_lshrrev_b32 v5, 4, v1")
    a("s_lshl_b32 s38, s28, 7")
    a("s_lshl_b32 s39, s30, 5")
    a("s_add_u32 s38, s38, s39")
    a("v_add_u32 v6, s38, v3")
    a("v_lshlrev_b32 v6, 10, v6")
    for jj in range(4):
        a("v_add_u32 v7, %d, v5" % (4 * jj))
        a("v_and_b32 v7, 7, v7")
        a("v_xor_b32 v7, v7, v4")
        a("v_lshl_add_u32 v%d, v7, 4, v6" % (vXo + jj))
        if jj:
            a("v_add_u32 v%d, %d, v%d" % (vXo + jj, jj * (8192 - 1024), vXo + jj))
    a("s_mul_i32 s38, s30, 192")
    a("s_mul_i32 s39, s29, 192")
    a("s_mov_b32 s40, 43691")
    a("s_mov_b32 s41, 2752")
    for jj in range(3):
        a("v_add_u32 v6, s38, v1")
        if jj:
            a("v_add_u32 v6, %d, v6" % (64 * jj))
        a("v_mul_lo_u32 v7, v6, s40")
        a("v_lshrrev_b32 v7, 19, v7")
        a("v_mul_u32_u24 v3, 12, v7")
        a("v_sub_u32 v3, v6, v3")
        a("v_mul_lo_u32 v7, v7, s41")
        a("v_add_u32 v7, s39, v7")
        if jj:
            a("v_subrev_u32 v7, %d, v7" % (1024 * jj))
        a("v_lshl_add_u32 v%d, v3, 4, v7" % (vWgo + jj))
        a("v_xor_b32 v3, 2, v3")
        a("v_lshl_add_u32 v%d, v3, 4, v7" % (vWuo + jj))
    a("s_lshl_b32 s31, s30, 12")
    a("s_mul_i32 s32, s30, 3072")
    a("s_add_u32 s32, s32, 16384")
    a("s_add_u32 s33, s32, 12288")
    a("s_mov_b32 s34, 0")
    a("s_mov_b32 s35, 0")
    a("s_waitcnt lgkmcnt(0)")
    srd(a, (12, 4), X_BYTES)
    srd(a, (16, 6), W_BYTES)
    srd(a, (20, 8), W_BYTES)
    srd(a, (24, 10), H_BYTES)

    def dma(st):
        b = (st % 4) * STG
        a("s_add_u32 m0, s31, %d" % b)
        a("s_nop 0")
        for jj in range(4):
            a.vmem("buffer_load_dwordx4 v%d, s[12:15], s34 offen offset:%d lds" % (vXo + jj, 1024 * jj), ("d", st))
        a("s_add_u32 m0, s32, %d" % b)
        a("s_nop 0")
        for jj in range(3):
            a.vmem("buffer_load_dwordx4 v%d, s[16:19], s35 offen offset:%d lds" % (vWgo + jj, 1024 * jj), ("d", st))
        a("s_add_u32 m0, s33, %d" % b)
        a("s_nop 0")
        for jj in range(3):
            a.vmem("buffer_load_dwordx4 v%d, s[20:23], s35 offen offset:%d lds" % (vWuo + jj, 1024 * jj), ("d", st))
        a("s_add_u32 s34, s34, 128")
        a("s_add_u32 s35, s35, %d" % (64 * 2752))

    for st in range(4):
        dma(st)

    a("s_and_b32 s38, s30, 1")
    a("s_lshr_b32 s39, s30, 1")
    a("v_and_b32 v3, 31, v1")
    a("s_lshl_b32 s40, s38, 6")
    a("v_add_u32 v3, s40, v3")
    a("v_lshlrev_b32 v3, 7, v3")
    a("v_lshrrev_b32 v4, 5, v1")
    a("v_bfe_u32 v5, v1, 1, 3")
    a("v_xor_b32 v4, v4, v5")
    for s in range(4):
        a("v_xor_b32 v6, %d, v4" % (2 * s))
        a("v_lshl_add_u32 v%d, v6, 4, v3" % (vXa[0] + s))
        a("v_add_u32 v%d, %d, v%d" % (vXa[1] + s, 2 * STG, vXa[0] + s))
    a("v_bfe_u32 v3, v1, 4, 1")
    a("v_lshrrev_b32 v4, 5, v1")
    a("v_bfe_u32 v5, v1, 2, 2")
    a("v_lshl_add_u32 v4, v4, 3, v5")
    a("v_mul_u32_u24 v4, 192, v4")
    a("v_and_b32 v5, 3, v1")
    a("v_lshl_add_u32 v4, v5, 3, v4")
    a("v_mul_u32_u24 v5, 12288, v3")
    a("v_add_u32 v4, v4, v5")
    a("v_add_u32 v4, 16384, v4")
    a("s_mul_i32 s40, s39, 3")
    for fbk in range(3):
        a("s_add_u32 s41, s40, %d" % fbk)
        a("v_xor_b32 v5, s41, v3")
        a("v_lshl_add_u32 v%d, v5, 5, v4" % (vWa[0] + fbk))
        a("v_add_u32 v%d, %d, v%d" % (vWa[1] + fbk, 2 * STG, vWa[0] + fbk))

    def reads(st, s, fs):
        b = st % 4
        hi = b // 2
        ob = (b % 2) * STG
        f = FR[fs]
        tag = ("f", st, s)
        l = []
        def x(mbk):
            return lambda: a.lds("ds_read_b128 %s, v%d offset:%d" % (vr(f + 4 * mbk, 4), vXa[hi] + s, ob + 4096 * mbk), tag + ("x", mbk))
        def w(fbk, half):
            return lambda: a.lds("ds_read_b64_tr_b16 %s, v%d offset:%d" % (vr(f + 8 + 4 * fbk + 2 * half, 2), vWa[hi] + fbk, ob + 3072 * s + 768 * half), tag + ("w", fbk))
        l = [x(0), w(0, 0), w(0, 1), x(1), w(1, 0), w(1, 1), w(2, 0), w(2, 1)]
        return l

    def mfma(st, s, fs, fbk, mbk):
        f = FR[fs]
        tag = ("f", st, s)
        a.wait(lg=[tag + ("x", mbk), tag + ("w", fbk)])
        c = vr(acc(mbk, fbk), 16)
        a("v_mfma_f32_32x32x16_bf16 %s, %s, %s, %s" % (c, vr(f + 8 + 4 * fbk, 4), vr(f + 4 * mbk, 4), "0" if (st == 0 and s == 0) else c))

    order = [(0, 0), (0, 1), (1, 0), (1, 1), (2, 0), (2, 1)]
    a.wait(vm=[("d", 0)])
    a("s_barrier")
    for r in reads(0, 0, 0):
        r()
    fs = 0
    for st in range(NST):
        for s in range(4):
            last = (st == NST - 1 and s == 3)
            if s < 3:
                rd = reads(st, s + 1, fs ^ 1)
            elif not last:
                rd = reads(st + 1, 0, fs ^ 1)
            else:
                rd = []
            if s < 3:
                sched = {0: rd[0:3], 1: rd[3:6], 2: rd[6:8]}
                for i, (fbk, mbk) in enumerate(order):
                    mfma(st, s, fs, fbk, mbk)
                    for r in sched.get(i, []):
                        r()
            else:
                for i, (fbk, mbk) in enumerate(order):
                    mfma(st, s, fs, fbk, mbk)
                    if i == 1 and not last:
                        a.wait(vm=[("d", st + 1)], lg_all=True)
                        a("s_barrier")
                        for r in rd[0:3]:
                            r()
                    if i == 2 and not last:
                        for r in rd[3:6]:
                            r()
                    if i == 3 and not last:
                        for r in rd[6:8]:
                            r()
                        if st + 4 < NST:
                            dma(st + 4)
            fs ^= 1

    a("s_nop 15")
    a("s_nop 3")
    a("s_lshl_b32 s40, s28, 2")
    a("s_lshl_b32 s41, s38, 1")
    a("s_add_u32 s40, s40, s41")
    a("s_mul_i32 s40, s40, 86")
    a("s_mul_i32 s41, s29, 6")
    a("s_mul_i32 s42, s39, 3")
    a("s_add_u32 s41, s41, s42")
    a("s_add_u32 s40, s40, s41")
    a("s_lshl_b32 s40, s40, 10")
    a("v_lshlrev_b32 v3, 4, v1")
    a("v_add_u32 v3, s40, v3")
    a("v_add_u32 v4, %d, v3" % (86 * 1024))
    a("s_mov_b32 s43, 0xbfb8aa3b")
    T = 32
    for fbk in range(3):
        a("s_add_u32 s42, s41, %d" % fbk)
        a("s_cmp_ge_u32 s42, 86")
        a("s_cbranch_scc1 L1_end")
        for mbk in range(2):
            c = acc(mbk, fbk)
            t = T + mbk * 20
            for j in range(8):
                a("v_mul_f32 v%d, s43, v%d" % (t + j, c + j))
            for j in range(8):
                a("v_exp_f32 v%d, v%d" % (t + j, t + j))
            for j in range(8):
                a("v_mul_f32 v%d, v%d, v%d" % (c + j, c + j, c + 8 + j))
            for j in range(8):
                a("v_add_f32 v%d, 1.0, v%d" % (t + j, t + j))
            for j in range(8):
                a("v_rcp_f32 v%d, v%d" % (t + j, t + j))
            a("s_nop 0")
            for j in range(8):
                a("v_mul_f32 v%d, v%d, v%d" % (t + j, t + j, c + j))
            for j in range(4):
                a("v_cvt_pk_bf16_f32 v%d, v%d, v%d" % (t + 8 + j, t + 2 * j, t + 2 * j + 1))
            a("buffer_store_dwordx4 %s, v%d, s[24:27], 0 offen offset:%d" % (vr(t + 8, 4), 3 + mbk, 1024 * fbk))
    a.label("L1_end")
    a("s_endpgm")
    return a.text()


def gen_k2():
    a = Asm()
    NIT = 11
    NS = 10
    PD = 7
    HD = 8
    ACC = 192
    def acc(da, mb):
        return ACC + (da + 2 * mb) * 16
    HR = 64
    WF = [32, 48]
    vH = 8
    vW = 10
    vA = 14

    a.label("ffn2_kernel")
    a("s_cmp_ge_u32 s2, 256")
    a("s_cbranch_scc1 L2_end")
    a("s_load_dwordx4 s[4:7], s[0:1], 24")
    a("s_load_dwordx2 s[10:11], s[0:1], 48")
    a("s_and_b32 s36, s2, 7")
    a("s_lshr_b32 s37, s2, 3")
    a("s_lshl_b32 s28, s36, 2")
    a("s_and_b32 s38, s37, 3")
    a("s_add_u32 s28, s28, s38")
    a("s_lshr_b32 s29, s37, 2")
    a("v_lshrrev_b32 v2, 6, v0")
    a("v_and_b32 v1, 63, v0")
    a("s_nop 0")
    a("v_readfirstlane_b32 s30, v2")
    a("s_nop 3")
    a("s_and_b32 s31, s30, 1")
    a("s_lshr_b32 s32, s30, 1")
    a("s_lshl_b32 s38, s28, 1")
    a("s_add_u32 s39, s38, s32")
    a("s_xor_b32 s40, s39, 1")
    a("s_mul_i32 s39, s39, 86")
    a("s_mul_i32 s40, s40, 86")
    a("s_mul_i32 s41, s30, 22")
    a("s_add_u32 s39, s39, s41")
    a("s_add_u32 s40, s40, s41")
    a("s_lshl_b32 s39, s39, 10")
    a("s_lshl_b32 s40, s40, 10")
    a("v_lshlrev_b32 v3, 4, v1")
    a("v_add_u32 v%d, s39, v3" % vH)
    a("v_add_u32 v%d, s40, v3" % (vH + 1))
    a("v_lshrrev_b32 v3, 3, v1")
    a("s_mul_i32 s38, s30, 352")
    a("v_add_u32 v3, s38, v3")
    a("v_lshlrev_b32 v3, 10, v3")
    a("s_lshl_b32 s38, s29, 7")
    a("v_add_u32 v3, s38, v3")
    a("v_and_b32 v4, 7, v1")
    a("v_bfe_u32 v5, v1, 4, 1")
    a("v_lshlrev_b32 v5, 2, v5")
    a("v_xor_b32 v4, v4, v5")
    a("v_lshl_add_u32 v%d, v4, 4, v3" % vW)
    for jj in range(1, 4):
        a("v_add_u32 v%d, %d, v%d" % (vW + jj, jj * 7168, vW))
    a("s_mul_i32 s33, s30, %d" % (NS * 4096))
    a("s_cmp_eq_u32 s30, 3")
    a("s_cselect_b32 s35, 0, %d" % (10 * 2048))
    a("s_waitcnt lgkmcnt(0)")
    srd(a, (12, 4), W_BYTES)
    srd(a, (16, 6), OUT_BYTES)
    srd(a, (24, 10), H_BYTES)

    def loads(t):
        a("s_add_u32 m0, s33, %d" % ((t % NS) * 4096))
        a("s_mov_b32 s34, %d" % (t * 32768))
        for jj in range(4):
            a.vmem("buffer_load_dwordx4 v%d, s[12:15], s34 offen offset:%d lds" % (vW + jj, 1024 * jj), ("w", t))
        if t == NIT - 1:
            so = "s35"
        else:
            a("s_mov_b32 s42, %d" % (t * 2048))
            so = "s42"
        hr = HR + (t % HD) * 16
        for ks in range(2):
            for mb in range(2):
                a.vmem("buffer_load_dwordx4 %s, v%d, s[24:27], %s offen offset:%d" % (vr(hr + (ks * 2 + mb) * 4, 4), vH + mb, so, 1024 * ks), ("h", t))

    for t in range(PD):
        loads(t)

    a("v_lshrrev_b32 v3, 5, v1")
    a("v_bfe_u32 v4, v1, 2, 2")
    a("v_lshl_add_u32 v3, v3, 2, v4")
    a("v_lshlrev_b32 v3, 7, v3")
    a("v_bfe_u32 v4, v1, 3, 1")
    a("v_xor_b32 v4, s31, v4")
    a("v_lshl_add_u32 v3, v4, 6, v3")
    a("v_bfe_u32 v4, v1, 4, 1")
    a("v_lshl_add_u32 v3, v4, 5, v3")
    a("v_and_b32 v4, 3, v1")
    a("v_lshl_add_u32 v3, v4, 3, v3")
    a("v_add_u32 v%d, s33, v3" % vA)
    a("v_xor_b32 v%d, 64, v%d" % (vA + 1, vA))

    def trreads(t):
        f = WF[t % 2]
        l = []
        for ks in range(2):
            for da in range(2):
                for half in range(2):
                    l.append((lambda ks=ks, da=da, half=half: a.lds("ds_read_b64_tr_b16 %s, v%d offset:%d" % (
                        vr(f + (ks * 2 + da) * 4 + 2 * half, 2), vA + da, (t % NS) * 4096 + ks * 2048 + half * 1024), ("t", t, ks, da))))
        return l

    a.wait(vm=[("w", 0)])
    for r in trreads(0):
        r()
    for t in range(NIT):
        f = WF[t % 2]
        hr = HR + (t % HD) * 16
        rd = []
        if t + 1 < NIT:
            a.wait(vm=[("w", t + 1)])
            rd = trreads(t + 1)
        else:
            a.wait(vm=[("h", t)])
        i = 0
        for ks in range(2):
            for da in range(2):
                for mb in range(2):
                    a.wait(lg=[("t", t, ks, da)])
                    c = vr(acc(da, mb), 16)
                    a("v_mfma_f32_32x32x16_bf16 %s, %s, %s, %s" % (c, vr(f + (ks * 2 + da) * 4, 4), vr(hr + (ks * 2 + mb) * 4, 4),
                                                                   "0" if (t == 0 and ks == 0) else c))
                    if i < 4 and rd:
                        rd[2 * i]()
                        rd[2 * i + 1]()
                    i += 1
        if t + PD < NIT:
            loads(t + PD)

    a("s_nop 15")
    a("s_nop 3")
    a("v_lshlrev_b32 v3, 4, v1")
    a("v_add_u32 v4, s33, v3")
    for x in range(1, 4):
        c = ACC + x * 16
        for j in range(4):
            a.lds("ds_write_b128 v4, %s offset:%d" % (vr(c + 4 * j, 4), (x - 1) * 4096 + j * 1024), "r")
    for x in range(1, 4):
        a("s_xor_b32 s38, s30, %d" % x)
        a("s_mul_i32 s38, s38, %d" % (NS * 4096))
        a("v_add_u32 v%d, s38, v3" % (4 + x))
    a.wait(lg_all=True)
    a("s_barrier")
    for x in range(1, 4):
        for j in range(4):
            a.lds("ds_read_b128 %s, v%d offset:%d" % (vr(64 + (x - 1) * 16 + 4 * j, 4), 4 + x, (x - 1) * 4096 + j * 1024), ("q", x))
    a("s_lshl_b32 s38, s28, 6")
    a("s_lshl_b32 s39, s32, 5")
    a("s_add_u32 s38, s38, s39")
    a("v_and_b32 v3, 31, v1")
    a("v_add_u32 v3, s38, v3")
    a("v_lshlrev_b32 v3, 10, v3")
    a("s_lshl_b32 s38, s29, 7")
    a("s_lshl_b32 s39, s31, 6")
    a("s_add_u32 s38, s38, s39")
    a("v_add_u32 v3, s38, v3")
    a("v_lshrrev_b32 v8, 5, v1")
    a("v_lshl_add_u32 v3, v8, 4, v3")
    for x in range(1, 4):
        a.wait(lg=[("q", x)])
        for j in range(16):
            a("v_add_f32 v%d, v%d, v%d" % (ACC + j, ACC + j, 64 + (x - 1) * 16 + j))
    for j in range(8):
        a("v_cvt_pk_bf16_f32 v%d, v%d, v%d" % (32 + j, ACC + 2 * j, ACC + 2 * j + 1))
    a("s_nop 1")
    for qq in range(2):
        a("v_permlane32_swap_b32 v%d, v%d" % (32 + 4 * qq, 32 + 4 * qq + 2))
        a("v_permlane32_swap_b32 v%d, v%d" % (32 + 4 * qq + 1, 32 + 4 * qq + 3))
    for qq in range(2):
        a("buffer_store_dwordx4 %s, v3, s[16:19], 0 offen offset:%d" % (vr(32 + 4 * qq, 4), 32 * qq))
    a.label("L2_end")
    a("s_endpgm")
    return a.text()


HEADER = """; Kernarg layout for this problem (56 bytes, ptrs only, base s[0:1]):
; @launch kernel=ffn1_kernel grid=(256,1,1) block=(256,1,1) lds=163840
; @launch kernel=ffn2_kernel grid=(256,1,1) block=(256,1,1) lds=163840
.amdgcn_target "amdgcn-amd-amdhsa--gfx950"
.text
"""

KD = """.amdhsa_kernel %s
  .amdhsa_next_free_vgpr %d
  .amdhsa_next_free_sgpr 64
  .amdhsa_accum_offset %d
  .amdhsa_group_segment_fixed_size 0
  .amdhsa_kernarg_size 56
  .amdhsa_user_sgpr_count 2
  .amdhsa_user_sgpr_kernarg_segment_ptr 1
  .amdhsa_system_sgpr_workgroup_id_x 1
.end_amdhsa_kernel
"""


def main():
    out = HEADER
    for name, g in (("ffn1_kernel", gen_k1), ("ffn2_kernel", gen_k2)):
        out += ".globl %s\n.p2align 8\n.type %s,@function\n" % (name, name)
        out += g()
    out += '.section .rodata,"a"\n.p2align 6\n'
    out += KD % ("ffn1_kernel", 256, 256)
    out += ".p2align 6\n"
    out += KD % ("ffn2_kernel", 256, 256)
    path = sys.argv[1] if len(sys.argv) > 1 else "standalone__swiglu_ffn__prompt.s"
    open(path, "w").write(out)


main()
```

```python
import sys

M, D, F = 2048, 512, 1376
KB16 = F // 16
H_BYTES = (M // 32) * KB16 * 1024
X_BYTES = M * D * 2
W_BYTES = D * F * 2
OUT_BYTES = M * D * 2

OPTS = set(sys.argv[2:])
TS = "ts" in OPTS
HLD = "" if "plainld" in OPTS else " sc1"
HST = " sc1"


class Asm:
    def __init__(self):
        self.lines = []
        self.vm = []
        self.lg = []

    def __call__(self, s):
        self.lines.append("    " + s)

    def label(self, l):
        self.lines.append(l + ":")

    def vmem(self, s, tag):
        self(s)
        self.vm.append(tag)
        assert len(self.vm) <= 63, "too many vmem outstanding"

    def lds(self, s, tag):
        self(s)
        self.lg.append(tag)

    def _need(self, q, tags):
        idx = -1
        for i, t in enumerate(q):
            if t in tags:
                idx = i
        if idx < 0:
            return None
        return len(q) - 1 - idx

    def wait(self, vm=(), lg=(), vm_all=False, lg_all=False):
        parts = []
        if vm_all:
            parts.append("vmcnt(0)")
            self.vm = []
        else:
            n = self._need(self.vm, set(vm))
            if n is not None:
                parts.append("vmcnt(%d)" % n)
                self.vm = self.vm[len(self.vm) - n:] if n else []
        if lg_all:
            if self.lg:
                parts.append("lgkmcnt(0)")
                self.lg = []
        else:
            n = self._need(self.lg, set(lg))
            if n is not None:
                n = min(n, 15)
                parts.append("lgkmcnt(%d)" % n)
                self.lg = self.lg[len(self.lg) - n:] if n else []
        if parts:
            self("s_waitcnt " + " ".join(parts))

    def text(self):
        return "\n".join(self.lines) + "\n"


def vr(a, n):
    return "v[%d:%d]" % (a, a + n - 1)


def srd(a, dst, src, sz):
    a("s_mov_b32 s%d, s%d" % (dst, src))
    a("s_and_b32 s%d, s%d, 0xffff" % (dst + 1, src + 1))
    a("s_mov_b32 s%d, %d" % (dst + 2, sz))
    a("s_mov_b32 s%d, 0x00020000" % (dst + 3))


def stamp(a, i):
    if not TS:
        return
    a("s_memrealtime s[%d:%d]" % (64 + 2 * i, 65 + 2 * i))
    a("s_waitcnt lgkmcnt(0)")
    a.lg = []


def stamp_store(a, kidx, n, wave, endlabel):
    if not TS:
        return
    a("s_memrealtime s[%d:%d]" % (64 + 2 * (n - 1), 65 + 2 * (n - 1)))
    a("s_waitcnt lgkmcnt(0)")
    a("s_cmp_lg_u32 s50, %d" % wave)
    a("s_cbranch_scc1 %s" % endlabel)
    a("s_mov_b64 exec, -1")
    a("s_mov_b32 s84, s16")
    a("s_and_b32 s85, s17, 0xffff")
    a("s_mov_b32 s86, 0x2000000")
    a("s_mov_b32 s87, 0x00020000")
    a("s_lshl_b32 s88, s2, 6")
    a("s_add_u32 s88, s88, %d" % ((16 << 20) + kidx * 256 * 64))
    a("v_mov_b32 v2, 0")
    for i in range(n):
        a("v_mov_b32 v4, s%d" % (64 + 2 * i))
        a("v_mov_b32 v5, s%d" % (65 + 2 * i))
        a("buffer_store_dwordx2 v[4:5], v2, s[84:87], s88 offen offset:%d" % (8 * i))
        a("s_nop 2")


STG = 40960
NST = 8
sX, sWG, sWU, sWD, sOUT, sH, sDBG = 20, 24, 28, 32, 36, 40, 44


def gen():
    a = Asm()
    a.label("standalone__swiglu_ffn__prompt_kernel")
    a("s_cmp_ge_u32 s2, 256")
    a("s_cbranch_scc1 L_end")
    stamp(a, 0)
    a("s_load_dwordx8 s[4:11], s[0:1], 0")
    a("s_load_dwordx4 s[12:15], s[0:1], 32")
    a("s_load_dwordx2 s[16:17], s[0:1], 48")
    a("v_lshrrev_b32 v2, 6, v0")
    a("v_and_b32 v1, 63, v0")
    a("s_and_b32 s53, s2, 7")
    a("v_readfirstlane_b32 s50, v2")
    a("s_lshr_b32 s54, s2, 3")
    a("s_and_b32 s48, s53, 1")
    a("s_lshl_b32 s48, s48, 3")
    a("s_and_b32 s55, s54, 7")
    a("s_add_u32 s48, s48, s55")
    a("s_lshr_b32 s49, s53, 1")
    a("s_lshl_b32 s49, s49, 2")
    a("s_lshr_b32 s55, s54, 3")
    a("s_add_u32 s49, s49, s55")
    a("s_lshl_b32 s51, s53, 2")
    a("s_and_b32 s55, s54, 3")
    a("s_add_u32 s51, s51, s55")
    a("s_lshr_b32 s52, s54, 2")
    a("s_cmp_ge_u32 s50, 4")
    a("s_cbranch_scc1 L_loader")

    ACC = 128
    def acc(mbk, fbk):
        return ACC + (mbk * 3 + fbk) * 16
    FR = [32, 52]
    vXa = [72, 88]
    vWa = [76, 92]
    a("s_cmp_ge_u32 s49, 15")
    a("s_cbranch_scc1 C_p2")
    a("s_and_b32 s56, s50, 1")
    a("s_lshr_b32 s57, s50, 1")
    a("v_and_b32 v3, 31, v1")
    a("s_lshl_b32 s58, s56, 6")
    a("v_add_u32 v3, s58, v3")
    a("v_lshlrev_b32 v3, 7, v3")
    a("v_lshrrev_b32 v4, 5, v1")
    a("v_bfe_u32 v5, v1, 1, 3")
    a("v_xor_b32 v4, v4, v5")
    for s in range(4):
        a("v_xor_b32 v6, %d, v4" % (2 * s))
        a("v_lshl_add_u32 v%d, v6, 4, v3" % (vXa[0] + s))
        a("v_add_u32 v%d, %d, v%d" % (vXa[1] + s, 2 * STG, vXa[0] + s))
    a("v_bfe_u32 v3, v1, 4, 1")
    a("v_lshrrev_b32 v4, 5, v1")
    a("v_bfe_u32 v5, v1, 2, 2")
    a("v_lshl_add_u32 v4, v4, 3, v5")
    a("v_mul_u32_u24 v4, 192, v4")
    a("v_and_b32 v5, 3, v1")
    a("v_lshl_add_u32 v4, v5, 3, v4")
    a("v_mul_u32_u24 v5, 12288, v3")
    a("v_add_u32 v4, v4, v5")
    a("v_add_u32 v4, 16384, v4")
    a("s_mul_i32 s58, s57, 3")
    for fbk in range(3):
        a("s_add_u32 s59, s58, %d" % fbk)
        a("v_xor_b32 v5, s59, v3")
        a("v_lshl_add_u32 v%d, v5, 5, v4" % (vWa[0] + fbk))
        a("v_add_u32 v%d, %d, v%d" % (vWa[1] + fbk, 2 * STG, vWa[0] + fbk))
    a("s_waitcnt lgkmcnt(0)")
    srd(a, sH, 16, H_BYTES)
    srd(a, sDBG, 14, 256)

    def reads(st, s, fs):
        b = st % 4
        hi = b // 2
        ob = (b % 2) * STG
        f = FR[fs]
        tag = ("f", st, s)
        def x(mbk):
            return lambda: a.lds("ds_read_b128 %s, v%d offset:%d" % (vr(f + 4 * mbk, 4), vXa[hi] + s, ob + 4096 * mbk), tag + ("x", mbk))
        def w(fbk, half):
            return lambda: a.lds("ds_read_b64_tr_b16 %s, v%d offset:%d" % (vr(f + 8 + 4 * fbk + 2 * half, 2), vWa[hi] + fbk, ob + 3072 * s + 768 * half), tag + ("w", fbk))
        return [x(0), w(0, 0), w(0, 1), x(1), w(1, 0), w(1, 1), w(2, 0), w(2, 1)]

    def mfma(st, s, fs, fbk, mbk):
        f = FR[fs]
        tag = ("f", st, s)
        a.wait(lg=[tag + ("x", mbk), tag + ("w", fbk)])
        c = vr(acc(mbk, fbk), 16)
        a("v_mfma_f32_32x32x16_bf16 %s, %s, %s, %s" % (c, vr(f + 8 + 4 * fbk, 4), vr(f + 4 * mbk, 4), "0" if (st == 0 and s == 0) else c))

    order = [(0, 0), (0, 1), (1, 0), (1, 1), (2, 0), (2, 1)]
    stamp(a, 1)
    a("s_barrier")
    stamp(a, 2)
    for r in reads(0, 0, 0):
        r()
    fs = 0
    for st in range(NST):
        for s in range(4):
            last = (st == NST - 1 and s == 3)
            if s < 3:
                rd = reads(st, s + 1, fs ^ 1)
            elif not last:
                rd = reads(st + 1, 0, fs ^ 1)
            else:
                rd = []
            if s < 3:
                sched = {0: rd[0:3], 1: rd[3:6], 2: rd[6:8]}
                for i, (fbk, mbk) in enumerate(order):
                    mfma(st, s, fs, fbk, mbk)
                    for r in sched.get(i, []):
                        r()
            else:
                for i, (fbk, mbk) in enumerate(order):
                    mfma(st, s, fs, fbk, mbk)
                    if i == 1:
                        a.wait(lg_all=True)
                        a("s_barrier")
                        for r in rd[0:3]:
                            r()
                    if i == 2:
                        for r in rd[3:6]:
                            r()
                    if i == 3:
                        for r in rd[6:8]:
                            r()
            fs ^= 1

    stamp(a, 3)
    a("s_lshl_b32 s58, s48, 2")
    a("s_lshl_b32 s59, s56, 1")
    a("s_add_u32 s58, s58, s59")
    a("s_mul_i32 s58, s58, 86")
    a("s_mul_i32 s59, s49, 6")
    a("s_mul_i32 s60, s57, 3")
    a("s_add_u32 s59, s59, s60")
    a("s_add_u32 s58, s58, s59")
    a("s_lshl_b32 s58, s58, 10")
    a("v_lshlrev_b32 v3, 4, v1")
    a("v_add_u32 v3, s58, v3")
    a("v_add_u32 v4, %d, v3" % (86 * 1024))
    a("s_mov_b32 s61, 0xbfb8aa3b")
    a("s_nop 7")
    T = 32
    for fbk in range(3):
        a("s_add_u32 s60, s59, %d" % fbk)
        a("s_cmp_ge_u32 s60, 86")
        a("s_cbranch_scc1 C_fin1")
        for mbk in range(2):
            c = acc(mbk, fbk)
            t = T + mbk * 20
            for j in range(8):
                a("v_mul_f32 v%d, s61, v%d" % (t + j, c + j))
            for j in range(8):
                a("v_exp_f32 v%d, v%d" % (t + j, t + j))
            for j in range(8):
                a("v_mul_f32 v%d, v%d, v%d" % (c + j, c + j, c + 8 + j))
            for j in range(8):
                a("v_add_f32 v%d, 1.0, v%d" % (t + j, t + j))
            for j in range(8):
                a("v_rcp_f32 v%d, v%d" % (t + j, t + j))
            a("s_nop 0")
            for j in range(8):
                a("v_mul_f32 v%d, v%d, v%d" % (t + j, t + j, c + j))
            for j in range(4):
                a("v_cvt_pk_bf16_f32 v%d, v%d, v%d" % (t + 8 + j, t + 2 * j, t + 2 * j + 1))
            a("buffer_store_dwordx4 %s, v%d, s[%d:%d], 0 offen offset:%d%s" % (vr(t + 8, 4), 3 + mbk, sH, sH + 3, 1024 * fbk, HST))
    a.label("C_fin1")
    stamp(a, 4)
    a("s_waitcnt vmcnt(0)")
    a("s_barrier")
    a("s_cmp_lg_u32 s50, 0")
    a("s_cbranch_scc1 C_p2b")
    a("s_lshl_b32 s58, s48, 4")
    a("s_add_u32 s58, s58, s49")
    a("v_mov_b32 v3, s58")
    a("v_mov_b32 v4, 1")
    a("s_mov_b64 exec, 1")
    a("buffer_store_byte v4, v3, s[%d:%d], 0 offen sc1" % (sDBG, sDBG + 3))
    a("s_mov_b64 exec, -1")
    a("s_branch C_p2b")
    a.label("C_p2")
    a("s_waitcnt lgkmcnt(0)")
    srd(a, sH, 16, H_BYTES)
    a("s_barrier")
    a.label("C_p2b")

    NIT = 11
    NS = 10
    HD = 9
    ACC2 = 192
    def acc2(da, mb):
        return ACC2 + (da + 2 * mb) * 16
    HR = 16
    WF = [160, 176]
    vH, vW, vA = 8, 10, 14
    srd(a, sWD, 10, W_BYTES)
    srd(a, sOUT, 12, OUT_BYTES)
    a("s_and_b32 s56, s50, 1")
    a("s_lshr_b32 s57, s50, 1")
    a("s_lshl_b32 s58, s51, 1")
    a("s_add_u32 s59, s58, s57")
    a("s_xor_b32 s60, s59, 1")
    a("s_mul_i32 s59, s59, 86")
    a("s_mul_i32 s60, s60, 86")
    a("s_mul_i32 s61, s50, 22")
    a("s_add_u32 s59, s59, s61")
    a("s_add_u32 s60, s60, s61")
    a("s_lshl_b32 s59, s59, 10")
    a("s_lshl_b32 s60, s60, 10")
    a("v_lshlrev_b32 v3, 4, v1")
    a("v_add_u32 v%d, s59, v3" % vH)
    a("v_add_u32 v%d, s60, v3" % (vH + 1))
    a("v_lshrrev_b32 v3, 3, v1")
    a("s_mul_i32 s58, s50, 352")
    a("v_add_u32 v3, s58, v3")
    a("v_lshlrev_b32 v3, 10, v3")
    a("s_lshl_b32 s58, s52, 7")
    a("v_add_u32 v3, s58, v3")
    a("v_and_b32 v4, 7, v1")
    a("v_bfe_u32 v5, v1, 4, 1")
    a("v_lshlrev_b32 v5, 2, v5")
    a("v_xor_b32 v4, v4, v5")
    a("v_lshl_add_u32 v%d, v4, 4, v3" % vW)
    for jj in range(1, 4):
        a("v_add_u32 v%d, %d, v%d" % (vW + jj, jj * 7168, vW))
    a("s_mul_i32 s62, s50, %d" % STG)
    a("s_cmp_eq_u32 s50, 3")
    a("s_cselect_b32 s63, 0, %d" % (10 * 2048))
    a("v_lshrrev_b32 v3, 5, v1")
    a("v_bfe_u32 v4, v1, 2, 2")
    a("v_lshl_add_u32 v3, v3, 2, v4")
    a("v_lshlrev_b32 v3, 7, v3")
    a("v_bfe_u32 v4, v1, 3, 1")
    a("v_xor_b32 v4, s56, v4")
    a("v_lshl_add_u32 v3, v4, 6, v3")
    a("v_bfe_u32 v4, v1, 4, 1")
    a("v_lshl_add_u32 v3, v4, 5, v3")
    a("v_and_b32 v4, 3, v1")
    a("v_lshl_add_u32 v3, v4, 3, v3")
    a("v_add_u32 v%d, s62, v3" % vA)
    a("v_xor_b32 v%d, 64, v%d" % (vA + 1, vA))
    a.vm = []
    a.lg = []
    a("s_barrier")
    stamp(a, 5)

    def hloads(t):
        if t == NIT - 1:
            so = "s63"
        else:
            a("s_mov_b32 s58, %d" % (t * 2048))
            so = "s58"
        hr = HR + (t % HD) * 16
        for ks in range(2):
            for mb in range(2):
                a.vmem("buffer_load_dwordx4 %s, v%d, s[%d:%d], %s offen offset:%d%s" % (
                    vr(hr + (ks * 2 + mb) * 4, 4), vH + mb, sH, sH + 3, so, 1024 * ks, HLD), ("h", t))

    def wlast():
        a("s_mov_b32 m0, s62")
        a("s_mov_b32 s59, %d" % (10 * 32768))
        for jj in range(4):
            a.vmem("buffer_load_dwordx4 v%d, s[%d:%d], s59 offen offset:%d lds" % (vW + jj, sWD, sWD + 3, 1024 * jj), ("w", 10))

    def trreads(t):
        f = WF[t % 2]
        l = []
        for ks in range(2):
            for da in range(2):
                for half in range(2):
                    l.append((lambda ks=ks, da=da, half=half: a.lds("ds_read_b64_tr_b16 %s, v%d offset:%d" % (
                        vr(f + (ks * 2 + da) * 4 + 2 * half, 2), vA + da, (t % NS) * 4096 + ks * 2048 + half * 1024), ("t", t, ks, da))))
        return l

    for t in range(HD):
        hloads(t)
    for r in trreads(0):
        r()
    for t in range(NIT):
        f = WF[t % 2]
        hr = HR + (t % HD) * 16
        rd = []
        if t + 1 < NIT:
            if t + 1 == NIT - 1:
                a.wait(vm=[("w", 10)])
            rd = trreads(t + 1)
        a.wait(vm=[("h", t)])
        i = 0
        for ks in range(2):
            for da in range(2):
                for mb in range(2):
                    a.wait(lg=[("t", t, ks, da)])
                    c = vr(acc2(da, mb), 16)
                    a("v_mfma_f32_32x32x16_bf16 %s, %s, %s, %s" % (c, vr(f + (ks * 2 + da) * 4, 4), vr(hr + (ks * 2 + mb) * 4, 4),
                                                                   "0" if (t == 0 and ks == 0) else c))
                    if i < 4 and rd:
                        rd[2 * i]()
                        rd[2 * i + 1]()
                    i += 1
        if t == 1:
            wlast()
        if t + HD < NIT:
            hloads(t + HD)

    stamp(a, 6)
    a("v_lshlrev_b32 v3, 4, v1")
    a("v_add_u32 v4, s62, v3")
    for x in range(1, 4):
        a("s_xor_b32 s58, s50, %d" % x)
        a("s_mul_i32 s58, s58, %d" % STG)
        a("v_add_u32 v%d, s58, v3" % (4 + x))
    a("s_nop 7")
    for x in range(1, 4):
        c = ACC2 + x * 16
        for j in range(4):
            a.lds("ds_write_b128 v4, %s offset:%d" % (vr(c + 4 * j, 4), (x - 1) * 4096 + j * 1024), "r")
    a.wait(lg_all=True)
    a("s_barrier")
    for x in range(1, 4):
        for j in range(4):
            a.lds("ds_read_b128 %s, v%d offset:%d" % (vr(64 + (x - 1) * 16 + 4 * j, 4), 4 + x, (x - 1) * 4096 + j * 1024), ("q", x))
    a("s_lshl_b32 s58, s51, 6")
    a("s_lshl_b32 s59, s57, 5")
    a("s_add_u32 s58, s58, s59")
    a("v_and_b32 v3, 31, v1")
    a("v_add_u32 v3, s58, v3")
    a("v_lshlrev_b32 v3, 10, v3")
    a("s_lshl_b32 s58, s52, 7")
    a("s_lshl_b32 s59, s56, 6")
    a("s_add_u32 s58, s58, s59")
    a("v_add_u32 v3, s58, v3")
    a("v_lshrrev_b32 v8, 5, v1")
    a("v_lshl_add_u32 v3, v8, 4, v3")
    for x in range(1, 4):
        a.wait(lg=[("q", x)])
        for j in range(16):
            a("v_add_f32 v%d, v%d, v%d" % (ACC2 + j, ACC2 + j, 64 + (x - 1) * 16 + j))
    for j in range(8):
        a("v_cvt_pk_bf16_f32 v%d, v%d, v%d" % (32 + j, ACC2 + 2 * j, ACC2 + 2 * j + 1))
    a("s_nop 1")
    for qq in range(2):
        a("v_permlane32_swap_b32 v%d, v%d" % (32 + 4 * qq, 32 + 4 * qq + 2))
        a("v_permlane32_swap_b32 v%d, v%d" % (32 + 4 * qq + 1, 32 + 4 * qq + 3))
    for qq in range(2):
        a("buffer_store_dwordx4 %s, v3, s[%d:%d], 0 offen offset:%d" % (vr(32 + 4 * qq, 4), sOUT, sOUT + 3, 32 * qq))
    if TS:
        a("s_waitcnt vmcnt(0)")
    stamp_store(a, 0, 8, 0, "L_end")
    a("s_endpgm")

    a.label("L_loader")
    a.vm = []
    a.lg = []
    vXo, vWgo, vWuo, vWd = 8, 12, 15, 18
    a("s_sub_u32 s56, s50, 4")
    a("v_lshrrev_b32 v3, 3, v1")
    a("v_and_b32 v4, 7, v1")
    a("v_lshrrev_b32 v5, 4, v1")
    a("s_lshl_b32 s58, s48, 7")
    a("s_lshl_b32 s59, s56, 5")
    a("s_add_u32 s58, s58, s59")
    a("v_add_u32 v6, s58, v3")
    a("v_lshlrev_b32 v6, 10, v6")
    for jj in range(4):
        a("v_add_u32 v7, %d, v5" % (4 * jj))
        a("v_and_b32 v7, 7, v7")
        a("v_xor_b32 v7, v7, v4")
        a("v_lshl_add_u32 v%d, v7, 4, v6" % (vXo + jj))
        if jj:
            a("v_add_u32 v%d, %d, v%d" % (vXo + jj, jj * (8192 - 1024), vXo + jj))
    a("s_mul_i32 s58, s56, 192")
    a("s_mul_i32 s59, s49, 192")
    a("s_mov_b32 s60, 43691")
    a("s_mov_b32 s61, 2752")
    for jj in range(3):
        a("v_add_u32 v6, s58, v1")
        if jj:
            a("v_add_u32 v6, %d, v6" % (64 * jj))
        a("v_mul_lo_u32 v7, v6, s60")
        a("v_lshrrev_b32 v7, 19, v7")
        a("v_mul_u32_u24 v19, 12, v7")
        a("v_sub_u32 v19, v6, v19")
        a("v_mul_lo_u32 v7, v7, s61")
        a("v_add_u32 v7, s59, v7")
        if jj:
            a("v_subrev_u32 v7, %d, v7" % (1024 * jj))
        a("v_lshl_add_u32 v%d, v19, 4, v7" % (vWgo + jj))
        a("v_xor_b32 v19, 2, v19")
        a("v_lshl_add_u32 v%d, v19, 4, v7" % (vWuo + jj))
    a("s_lshl_b32 s58, s56, 3")
    a("v_add_u32 v6, s58, v3")
    a("v_lshlrev_b32 v6, 10, v6")
    a("s_lshl_b32 s58, s52, 7")
    a("v_add_u32 v6, s58, v6")
    a("v_bfe_u32 v7, v1, 4, 1")
    a("v_lshlrev_b32 v7, 2, v7")
    a("v_xor_b32 v7, v7, v4")
    a("v_lshl_add_u32 v%d, v7, 4, v6" % vWd)
    a("s_lshl_b32 s57, s56, 12")
    a("s_mul_i32 s58, s56, 3072")
    a("s_add_u32 s58, s58, 16384")
    a("s_add_u32 s59, s58, 12288")
    a("s_mov_b32 s60, 0")
    a("s_mov_b32 s61, 0")
    a("s_lshl_b32 s62, s56, 10")
    a("s_waitcnt lgkmcnt(0)")
    srd(a, sX, 4, X_BYTES)
    srd(a, sWG, 6, W_BYTES)
    srd(a, sWU, 8, W_BYTES)
    srd(a, sWD, 10, W_BYTES)
    srd(a, sDBG, 14, 256)

    def dma(st):
        b = (st % 4) * STG
        a("s_add_u32 m0, s57, %d" % b)
        a("s_nop 0")
        for jj in range(4):
            a.vmem("buffer_load_dwordx4 v%d, s[%d:%d], s60 offen offset:%d lds" % (vXo + jj, sX, sX + 3, 1024 * jj), ("d", st))
        a("s_add_u32 m0, s58, %d" % b)
        a("s_nop 0")
        for jj in range(3):
            a.vmem("buffer_load_dwordx4 v%d, s[%d:%d], s61 offen offset:%d lds" % (vWgo + jj, sWG, sWG + 3, 1024 * jj), ("d", st))
        a("s_add_u32 m0, s59, %d" % b)
        a("s_nop 0")
        for jj in range(3):
            a.vmem("buffer_load_dwordx4 v%d, s[%d:%d], s61 offen offset:%d lds" % (vWuo + jj, sWU, sWU + 3, 1024 * jj), ("d", st))
        a("s_add_u32 s60, s60, 128")
        a("s_add_u32 s61, s61, %d" % (64 * 2752))

    def wdpre(reg):
        for t in range(10):
            a("s_add_u32 m0, s62, %d" % (reg * STG + t * 4096))
            a("s_mov_b32 s63, %d" % ((352 * reg + 32 * t) * 1024))
            a.vmem("buffer_load_dwordx4 v%d, s[%d:%d], s63 offen lds" % (vWd, sWD, sWD + 3), ("p", reg))

    a("s_cmp_ge_u32 s49, 15")
    a("s_cbranch_scc1 LD_nop1")
    stamp(a, 1)
    for st in range(4):
        dma(st)
    stamp(a, 2)
    a.wait(vm=[("d", 0)])
    a("s_barrier")
    for st in range(NST - 1):
        a.wait(vm=[("d", st + 1)])
        a("s_barrier")
        if st + 4 < NST:
            dma(st + 4)
        else:
            wdpre(st - 4)
    a("s_barrier")
    stamp(a, 3)
    wdpre(3)
    a("s_branch LD_e")
    a.label("LD_nop1")
    a.vm = []
    for reg in range(4):
        wdpre(reg)
    a.label("LD_e")
    a("s_barrier")
    stamp(a, 4)
    a.wait(vm_all=True)
    stamp(a, 5)
    a("s_cmp_lg_u32 s50, 4")
    a("s_cbranch_scc1 LD_w")
    a("s_lshr_b32 s58, s51, 1")
    a("s_lshl_b32 s58, s58, 4")
    a("v_mov_b32 v3, s58")
    a("s_mov_b32 s59, 0")
    a("s_mov_b64 exec, 1")
    a.label("LD_poll")
    a("buffer_load_dwordx4 v[4:7], v3, s[%d:%d], 0 offen sc1" % (sDBG, sDBG + 3))
    a("s_waitcnt vmcnt(0)")
    a("v_and_b32 v4, v4, v5")
    a("v_or_b32 v7, 0x01000000, v7")
    a("v_and_b32 v6, v6, v7")
    a("v_and_b32 v4, v4, v6")
    a("s_add_u32 s59, s59, 1")
    a("v_readfirstlane_b32 s60, v4")
    a("s_nop 3")
    a("s_cmp_eq_u32 s60, 0x01010101")
    a("s_cbranch_scc1 LD_done")
    a("s_cmp_ge_u32 s59, 0x400000")
    a("s_cbranch_scc1 LD_done")
    a("s_sleep 1")
    a("s_branch LD_poll")
    a.label("LD_done")
    a("s_mov_b64 exec, -1")
    a.label("LD_w")
    a("s_barrier")
    stamp_store(a, 1, 7, 4, "L_end")
    a.label("L_end")
    a("s_endpgm")
    return a.text()


HEADER = """; Kernarg layout for this problem (56 bytes, ptrs only, base s[0:1]):
; @launch grid=(256,1,1) block=(512,1,1) lds=163840
.amdgcn_target "amdgcn-amd-amdhsa--gfx950"
.text
.globl standalone__swiglu_ffn__prompt_kernel
.p2align 8
.type standalone__swiglu_ffn__prompt_kernel,@function
"""

KD = """.section .rodata,"a"
.p2align 6
.amdhsa_kernel standalone__swiglu_ffn__prompt_kernel
  .amdhsa_next_free_vgpr 256
  .amdhsa_next_free_sgpr 96
  .amdhsa_accum_offset 256
  .amdhsa_group_segment_fixed_size 0
  .amdhsa_kernarg_size 56
  .amdhsa_user_sgpr_count 2
  .amdhsa_user_sgpr_kernarg_segment_ptr 1
  .amdhsa_system_sgpr_workgroup_id_x 1
.end_amdhsa_kernel
"""


def main():
    out = HEADER + gen() + KD
    path = sys.argv[1] if len(sys.argv) > 1 else "standalone__swiglu_ffn__prompt.s"
    open(path, "w").write(out)


main()
```

```python
import sys

M, D, F = 2048, 512, 1376
KB16 = F // 16
H_BYTES = (M // 32) * KB16 * 1024
X_BYTES = M * D * 2
W_BYTES = D * F * 2
OUT_BYTES = M * D * 2

OPTS = set(sys.argv[2:])
TS = "ts" in OPTS
HLD = "" if "plainld" in OPTS else " sc1"
HST = " sc1"


class Asm:
    def __init__(self):
        self.lines = []
        self.vm = []
        self.lg = []

    def __call__(self, s):
        self.lines.append("    " + s)

    def label(self, l):
        self.lines.append(l + ":")

    def vmem(self, s, tag):
        self(s)
        self.vm.append(tag)
        assert len(self.vm) <= 63, "too many vmem outstanding"

    def lds(self, s, tag):
        self(s)
        self.lg.append(tag)

    def _need(self, q, tags):
        idx = -1
        for i, t in enumerate(q):
            if t in tags:
                idx = i
        if idx < 0:
            return None
        return len(q) - 1 - idx

    def wait(self, vm=(), lg=(), vm_all=False, lg_all=False):
        parts = []
        if vm_all:
            parts.append("vmcnt(0)")
            self.vm = []
        else:
            n = self._need(self.vm, set(vm))
            if n is not None:
                parts.append("vmcnt(%d)" % n)
                self.vm = self.vm[len(self.vm) - n:] if n else []
        if lg_all:
            if self.lg:
                parts.append("lgkmcnt(0)")
                self.lg = []
        else:
            n = self._need(self.lg, set(lg))
            if n is not None:
                n = min(n, 15)
                parts.append("lgkmcnt(%d)" % n)
                self.lg = self.lg[len(self.lg) - n:] if n else []
        if parts:
            self("s_waitcnt " + " ".join(parts))

    def text(self):
        return "\n".join(self.lines) + "\n"


def vr(a, n):
    return "v[%d:%d]" % (a, a + n - 1)


def srd(a, dst, src, sz):
    a("s_mov_b32 s%d, s%d" % (dst, src))
    a("s_and_b32 s%d, s%d, 0xffff" % (dst + 1, src + 1))
    a("s_mov_b32 s%d, %d" % (dst + 2, sz))
    a("s_mov_b32 s%d, 0x00020000" % (dst + 3))


def stamp(a, i):
    if not TS:
        return
    a("s_memrealtime s[%d:%d]" % (64 + 2 * i, 65 + 2 * i))
    a("s_waitcnt lgkmcnt(0)")
    a.lg = []


def stamp_store(a, kidx, n, wave, endlabel):
    if not TS:
        return
    a("s_memrealtime s[%d:%d]" % (64 + 2 * (n - 1), 65 + 2 * (n - 1)))
    a("s_waitcnt lgkmcnt(0)")
    a("s_cmp_lg_u32 s50, %d" % wave)
    a("s_cbranch_scc1 %s" % endlabel)
    a("s_mov_b64 exec, -1")
    a("s_memtime s[94:95]")
    a("s_waitcnt lgkmcnt(0)")
    a("s_mov_b32 s96, s16")
    a("s_and_b32 s97, s17, 0xffff")
    a("s_mov_b32 s98, 0x2000000")
    a("s_mov_b32 s99, 0x00020000")
    a("s_lshl_b32 s100, s2, 7")
    a("s_add_u32 s100, s100, %d" % ((16 << 20) + kidx * 256 * 128))
    a("v_mov_b32 v2, 0")
    for i in list(range(n)) + [14, 15]:
        a("v_mov_b32 v4, s%d" % (64 + 2 * i))
        a("v_mov_b32 v5, s%d" % (65 + 2 * i))
        a("buffer_store_dwordx2 v[4:5], v2, s[96:99], s100 offen offset:%d" % (8 * i))
        a("s_nop 2")


STG = 40960
NST = 8
sX, sWG, sWU, sWD, sOUT, sH, sDBG = 20, 24, 28, 32, 36, 40, 44


NPRE = 4
NIT = 11
PDH = 4
ACC2 = 224
W10 = 208
WF = [176, 192]
HR = 88
vH, vA = 24, 26


def p2_setup(a):
    srd(a, sWD, 10, W_BYTES)
    srd(a, sOUT, 12, OUT_BYTES)
    a("s_and_b32 s56, s50, 3")
    a("s_lshr_b32 s57, s50, 2")
    a("s_lshl_b32 s58, s51, 1")
    a("s_add_u32 s59, s58, s57")
    a("s_mul_i32 s59, s59, 86")
    a("s_mul_i32 s61, s56, 22")
    a("s_add_u32 s59, s59, s61")
    a("s_lshl_b32 s59, s59, 10")
    a("v_lshlrev_b32 v3, 4, v1")
    a("v_add_u32 v%d, s59, v3" % vH)
    a("s_mul_i32 s62, s56, %d" % STG)
    a("s_cmp_eq_u32 s56, 3")
    a("s_cselect_b32 s63, 0, %d" % (10 * 2048))
    a("s_and_b32 s58, s56, 1")
    a("s_lshr_b32 s59, s56, 1")
    a("v_lshrrev_b32 v3, 5, v1")
    a("v_bfe_u32 v4, v1, 2, 2")
    a("v_lshl_add_u32 v3, v3, 2, v4")
    a("v_lshlrev_b32 v3, 7, v3")
    a("v_bfe_u32 v4, v1, 3, 1")
    a("v_xor_b32 v4, s58, v4")
    a("v_lshl_add_u32 v3, v4, 6, v3")
    a("v_bfe_u32 v4, v1, 4, 1")
    a("v_xor_b32 v4, s59, v4")
    a("v_lshl_add_u32 v3, v4, 5, v3")
    a("v_and_b32 v4, 3, v1")
    a("v_lshl_add_u32 v3, v4, 3, v3")
    a("v_add_u32 v%d, s62, v3" % vA)
    a("v_xor_b32 v%d, 64, v%d" % (vA + 1, vA))
    for ks in range(2):
        for da in range(2):
            for half in range(2):
                a("ds_read_b64_tr_b16 %s, v%d offset:%d" % (vr(W10 + (ks * 2 + da) * 4 + 2 * half, 2), vA + da, ks * 2048 + half * 1024))
    a("s_waitcnt lgkmcnt(0)")
    a.lg = []


def p2_main(a):
    a.label("P2_main")
    a.vm = []
    a.lg = []
    a("s_barrier")
    stamp(a, 5 if True else 0)
    units = [10] + list(range(10))

    def hloads(t):
        if t == NIT - 1:
            so = "s63"
        else:
            a("s_mov_b32 s58, %d" % (t * 2048))
            so = "s58"
        for ks in range(2):
            a.vmem("buffer_load_dwordx4 %s, v%d, s[%d:%d], %s offen offset:%d%s" % (
                vr(HR + t * 8 + ks * 4, 4), vH, sH, sH + 3, so, 1024 * ks, HLD), ("h", t))

    def trreads(t, f):
        l = []
        for ks in range(2):
            for da in range(2):
                for half in range(2):
                    l.append((lambda ks=ks, da=da, half=half: a.lds("ds_read_b64_tr_b16 %s, v%d offset:%d" % (
                        vr(f + (ks * 2 + da) * 4 + 2 * half, 2), vA + da, t * 4096 + ks * 2048 + half * 1024), ("t", t, ks, da))))
        return l

    for i in range(PDH):
        hloads(units[i])
    for i, t in enumerate(units):
        f = W10 if t == 10 else WF[i % 2]
        rd = []
        if i + 1 < NIT:
            rd = trreads(units[i + 1], WF[(i + 1) % 2])
        a.wait(vm=[("h", t)])
        n = 0
        for ks in range(2):
            for da in range(2):
                a.wait(lg=[("t", t, ks, da)])
                c = vr(ACC2 + da * 16, 16)
                a("v_mfma_f32_32x32x16_bf16 %s, %s, %s, %s" % (c, vr(f + (ks * 2 + da) * 4, 4), vr(HR + t * 8 + ks * 4, 4),
                                                               "0" if (i == 0 and ks == 0) else c))
                if rd:
                    rd[2 * n]()
                    rd[2 * n + 1]()
                n += 1
            if ks == 0 and i + PDH < NIT:
                hloads(units[i + PDH])
        if i == NIT - 2:
            a.wait(lg_all=True)
            a("s_barrier")
    stamp(a, 6)
    a("v_lshlrev_b32 v3, 4, v1")
    a("s_lshl_b32 s58, s57, 13")
    a("v_add_u32 v3, s58, v3")
    a("v_add_u32 v4, s62, v3")
    for x in range(1, 4):
        a("s_xor_b32 s58, s56, %d" % x)
        a("s_mul_i32 s58, s58, %d" % STG)
        a("v_add_u32 v%d, s58, v3" % (4 + x))
    a("s_nop 7")
    for p in range(1, 4):
        c = ACC2 + (p & 1) * 16 + (p >> 1) * 8
        for j in range(2):
            a.lds("ds_write_b128 v4, %s offset:%d" % (vr(c + 4 * j, 4), (p - 1) * 2048 + j * 1024), "r")
    a.wait(lg_all=True)
    a("s_barrier")
    for x in range(1, 4):
        for j in range(2):
            a.lds("ds_read_b128 %s, v%d offset:%d" % (vr(64 + (x - 1) * 8 + 4 * j, 4), 4 + x, (x - 1) * 2048 + j * 1024), ("q", x))
    a("s_lshl_b32 s58, s51, 6")
    a("s_lshl_b32 s59, s57, 5")
    a("s_add_u32 s58, s58, s59")
    a("v_and_b32 v3, 31, v1")
    a("v_add_u32 v3, s58, v3")
    a("v_lshlrev_b32 v3, 10, v3")
    a("s_lshl_b32 s58, s52, 7")
    a("s_and_b32 s59, s56, 1")
    a("s_lshl_b32 s59, s59, 6")
    a("s_add_u32 s58, s58, s59")
    a("s_lshr_b32 s59, s56, 1")
    a("s_lshl_b32 s59, s59, 5")
    a("s_add_u32 s58, s58, s59")
    a("v_add_u32 v3, s58, v3")
    a("v_lshrrev_b32 v8, 5, v1")
    a("v_lshl_add_u32 v3, v8, 4, v3")
    for x in range(1, 4):
        a.wait(lg=[("q", x)])
        for j in range(8):
            a("v_add_f32 v%d, v%d, v%d" % (ACC2 + j, ACC2 + j, 64 + (x - 1) * 8 + j))
    for j in range(4):
        a("v_cvt_pk_bf16_f32 v%d, v%d, v%d" % (32 + j, ACC2 + 2 * j, ACC2 + 2 * j + 1))
    a("s_nop 1")
    a("v_permlane32_swap_b32 v32, v34")
    a("v_permlane32_swap_b32 v33, v35")
    a("buffer_store_dwordx4 v[32:35], v3, s[%d:%d], 0 offen" % (sOUT, sOUT + 3))
    if TS:
        a("s_waitcnt vmcnt(0)")
        a("s_cmp_eq_u32 s50, 4")
        a("s_cbranch_scc1 TS_l")
        stamp_store(a, 0, 8, 0, "L_end")
        a("s_endpgm")
        a.label("TS_l")
        stamp_store(a, 1, 8, 4, "L_end")


def gen():
    a = Asm()
    a.label("standalone__swiglu_ffn__prompt_kernel")
    a("s_cmp_ge_u32 s2, 256")
    a("s_cbranch_scc1 L_end")
    stamp(a, 0)
    if TS:
        a("s_memtime s[92:93]")
    a("s_load_dwordx8 s[4:11], s[0:1], 0")
    a("s_load_dwordx4 s[12:15], s[0:1], 32")
    a("s_load_dwordx2 s[16:17], s[0:1], 48")
    a("v_lshrrev_b32 v2, 6, v0")
    a("v_and_b32 v1, 63, v0")
    a("s_and_b32 s53, s2, 7")
    a("v_readfirstlane_b32 s50, v2")
    a("s_lshr_b32 s54, s2, 3")
    a("s_and_b32 s48, s53, 1")
    a("s_lshl_b32 s48, s48, 3")
    a("s_and_b32 s55, s54, 7")
    a("s_add_u32 s48, s48, s55")
    a("s_lshr_b32 s49, s53, 1")
    a("s_lshl_b32 s49, s49, 2")
    a("s_lshr_b32 s55, s54, 3")
    a("s_add_u32 s49, s49, s55")
    a("s_lshl_b32 s51, s53, 2")
    a("s_and_b32 s55, s54, 3")
    a("s_add_u32 s51, s51, s55")
    a("s_lshr_b32 s52, s54, 2")
    a("s_cmp_ge_u32 s50, 4")
    a("s_cbranch_scc1 L_loader")

    ACC = 128
    def acc(mbk, fbk):
        return ACC + (mbk * 3 + fbk) * 16
    FR = [32, 52]
    vXa = [72, 88]
    vWa = [76, 92]
    a("s_cmp_ge_u32 s49, 15")
    a("s_cbranch_scc1 C_p2")
    a("s_and_b32 s56, s50, 1")
    a("s_lshr_b32 s57, s50, 1")
    a("v_and_b32 v3, 31, v1")
    a("s_lshl_b32 s58, s56, 6")
    a("v_add_u32 v3, s58, v3")
    a("v_lshlrev_b32 v3, 7, v3")
    a("v_lshrrev_b32 v4, 5, v1")
    a("v_bfe_u32 v5, v1, 1, 3")
    a("v_xor_b32 v4, v4, v5")
    for s in range(4):
        a("v_xor_b32 v6, %d, v4" % (2 * s))
        a("v_lshl_add_u32 v%d, v6, 4, v3" % (vXa[0] + s))
        a("v_add_u32 v%d, %d, v%d" % (vXa[1] + s, 2 * STG, vXa[0] + s))
    a("v_bfe_u32 v3, v1, 4, 1")
    a("v_lshrrev_b32 v4, 5, v1")
    a("v_bfe_u32 v5, v1, 2, 2")
    a("v_lshl_add_u32 v4, v4, 3, v5")
    a("v_mul_u32_u24 v4, 192, v4")
    a("v_and_b32 v5, 3, v1")
    a("v_lshl_add_u32 v4, v5, 3, v4")
    a("v_mul_u32_u24 v5, 12288, v3")
    a("v_add_u32 v4, v4, v5")
    a("v_add_u32 v4, 16384, v4")
    a("s_mul_i32 s58, s57, 3")
    for fbk in range(3):
        a("s_add_u32 s59, s58, %d" % fbk)
        a("v_xor_b32 v5, s59, v3")
        a("v_lshl_add_u32 v%d, v5, 5, v4" % (vWa[0] + fbk))
        a("v_add_u32 v%d, %d, v%d" % (vWa[1] + fbk, 2 * STG, vWa[0] + fbk))
    a("s_waitcnt lgkmcnt(0)")
    srd(a, sH, 16, H_BYTES)
    srd(a, sDBG, 14, 256)

    def reads(st, s, fs):
        b = st % 4
        hi = b // 2
        ob = (b % 2) * STG
        f = FR[fs]
        tag = ("f", st, s)
        if "nocomp" in OPTS:
            return [lambda: None] * 8
        def x(mbk):
            return lambda: a.lds("ds_read_b128 %s, v%d offset:%d" % (vr(f + 4 * mbk, 4), vXa[hi] + s, ob + 4096 * mbk), tag + ("x", mbk))
        def w(fbk, half):
            return lambda: a.lds("ds_read_b64_tr_b16 %s, v%d offset:%d" % (vr(f + 8 + 4 * fbk + 2 * half, 2), vWa[hi] + fbk, ob + 3072 * s + 768 * half), tag + ("w", fbk))
        return [x(0), w(0, 0), w(0, 1), x(1), w(1, 0), w(1, 1), w(2, 0), w(2, 1)]

    def mfma(st, s, fs, fbk, mbk):
        if "nocomp" in OPTS or ("nomfma" in OPTS):
            return
        f = FR[fs]
        tag = ("f", st, s)
        a.wait(lg=[tag + ("x", mbk), tag + ("w", fbk)])
        c = vr(acc(mbk, fbk), 16)
        a("v_mfma_f32_32x32x16_bf16 %s, %s, %s, %s" % (c, vr(f + 8 + 4 * fbk, 4), vr(f + 4 * mbk, 4), "0" if (st == 0 and s == 0) else c))

    order = [(0, 0), (0, 1), (1, 0), (1, 1), (2, 0), (2, 1)]
    stamp(a, 1)
    a("s_barrier")
    stamp(a, 2)
    for r in reads(0, 0, 0):
        r()
    fs = 0
    for st in range(NST):
        for s in range(4):
            last = (st == NST - 1 and s == 3)
            if s < 3:
                rd = reads(st, s + 1, fs ^ 1)
            elif not last:
                rd = reads(st + 1, 0, fs ^ 1)
            else:
                rd = []
            if s < 3:
                sched = {0: rd[0:3], 1: rd[3:6], 2: rd[6:8]}
                for i, (fbk, mbk) in enumerate(order):
                    mfma(st, s, fs, fbk, mbk)
                    for r in sched.get(i, []):
                        r()
            else:
                for i, (fbk, mbk) in enumerate(order):
                    mfma(st, s, fs, fbk, mbk)
                    if i == 1:
                        a.wait(lg_all=True)
                        a("s_barrier")
                        for r in rd[0:3]:
                            r()
                    if i == 2:
                        for r in rd[3:6]:
                            r()
                    if i == 3:
                        for r in rd[6:8]:
                            r()
            fs ^= 1

    stamp(a, 3)
    a("s_lshl_b32 s58, s48, 2")
    a("s_lshl_b32 s59, s56, 1")
    a("s_add_u32 s58, s58, s59")
    a("s_mul_i32 s58, s58, 86")
    a("s_mul_i32 s59, s49, 6")
    a("s_mul_i32 s60, s57, 3")
    a("s_add_u32 s59, s59, s60")
    a("s_add_u32 s58, s58, s59")
    a("s_lshl_b32 s58, s58, 10")
    a("v_lshlrev_b32 v3, 4, v1")
    a("v_add_u32 v3, s58, v3")
    a("v_add_u32 v4, %d, v3" % (86 * 1024))
    a("s_mov_b32 s61, 0xbfb8aa3b")
    a("s_nop 7")
    T = 32
    for fbk in range(3):
        a("s_add_u32 s60, s59, %d" % fbk)
        a("s_cmp_ge_u32 s60, 86")
        a("s_cbranch_scc1 C_fin1")
        for mbk in range(2):
            c = acc(mbk, fbk)
            t = T + mbk * 20
            for j in range(8):
                a("v_mul_f32 v%d, s61, v%d" % (t + j, c + j))
            for j in range(8):
                a("v_exp_f32 v%d, v%d" % (t + j, t + j))
            for j in range(8):
                a("v_mul_f32 v%d, v%d, v%d" % (c + j, c + j, c + 8 + j))
            for j in range(8):
                a("v_add_f32 v%d, 1.0, v%d" % (t + j, t + j))
            for j in range(8):
                a("v_rcp_f32 v%d, v%d" % (t + j, t + j))
            a("s_nop 0")
            for j in range(8):
                a("v_mul_f32 v%d, v%d, v%d" % (t + j, t + j, c + j))
            for j in range(4):
                a("v_cvt_pk_bf16_f32 v%d, v%d, v%d" % (t + 8 + j, t + 2 * j, t + 2 * j + 1))
            a("buffer_store_dwordx4 %s, v%d, s[%d:%d], 0 offen offset:%d%s" % (vr(t + 8, 4), 3 + mbk, sH, sH + 3, 1024 * fbk, HST))
    a.label("C_fin1")
    stamp(a, 4)
    a("s_waitcnt vmcnt(0)")
    a("s_barrier")
    a("s_cmp_lg_u32 s50, 0")
    a("s_cbranch_scc1 C_p2b")
    a("s_lshl_b32 s58, s48, 4")
    a("s_add_u32 s58, s58, s49")
    a("v_mov_b32 v3, s58")
    a("v_mov_b32 v4, 1")
    a("s_mov_b64 exec, 1")
    a("buffer_store_byte v4, v3, s[%d:%d], 0 offen sc1" % (sDBG, sDBG + 3))
    a("s_mov_b64 exec, -1")
    a("s_branch C_p2b")
    a.label("C_p2")
    a("s_waitcnt lgkmcnt(0)")
    srd(a, sH, 16, H_BYTES)
    a("s_barrier")
    a.label("C_p2b")
    p2_setup(a)
    a("s_barrier")
    a("s_branch P2_main")

    a.label("L_loader")
    a.vm = []
    a.lg = []
    vXo, vWgo, vWuo, vWd = 8, 12, 15, 18
    a("s_sub_u32 s56, s50, 4")
    a("v_lshrrev_b32 v3, 3, v1")
    a("v_and_b32 v4, 7, v1")
    a("v_lshrrev_b32 v5, 4, v1")
    a("s_lshl_b32 s58, s48, 7")
    a("s_lshl_b32 s59, s56, 5")
    a("s_add_u32 s58, s58, s59")
    a("v_add_u32 v6, s58, v3")
    a("v_lshlrev_b32 v6, 10, v6")
    for jj in range(4):
        a("v_add_u32 v7, %d, v5" % (4 * jj))
        a("v_and_b32 v7, 7, v7")
        a("v_xor_b32 v7, v7, v4")
        a("v_lshl_add_u32 v%d, v7, 4, v6" % (vXo + jj))
        if jj:
            a("v_add_u32 v%d, %d, v%d" % (vXo + jj, jj * (8192 - 1024), vXo + jj))
    a("s_mul_i32 s58, s56, 192")
    a("s_mul_i32 s59, s49, 192")
    a("s_mov_b32 s60, 43691")
    a("s_mov_b32 s61, 2752")
    for jj in range(3):
        a("v_add_u32 v6, s58, v1")
        if jj:
            a("v_add_u32 v6, %d, v6" % (64 * jj))
        a("v_mul_lo_u32 v7, v6, s60")
        a("v_lshrrev_b32 v7, 19, v7")
        a("v_mul_u32_u24 v19, 12, v7")
        a("v_sub_u32 v19, v6, v19")
        a("v_mul_lo_u32 v7, v7, s61")
        a("v_add_u32 v7, s59, v7")
        if jj:
            a("v_subrev_u32 v7, %d, v7" % (1024 * jj))
        a("v_lshl_add_u32 v%d, v19, 4, v7" % (vWgo + jj))
        a("v_xor_b32 v19, 2, v19")
        a("v_lshl_add_u32 v%d, v19, 4, v7" % (vWuo + jj))
    a("s_lshl_b32 s58, s56, 3")
    a("v_add_u32 v6, s58, v3")
    a("v_lshlrev_b32 v6, 10, v6")
    a("s_lshl_b32 s58, s52, 7")
    a("v_add_u32 v6, s58, v6")
    a("v_bfe_u32 v7, v1, 4, 1")
    a("v_lshlrev_b32 v7, 2, v7")
    a("v_xor_b32 v7, v7, v4")
    a("v_lshl_add_u32 v%d, v7, 4, v6" % vWd)
    a("s_lshl_b32 s57, s56, 12")
    a("s_mul_i32 s58, s56, 3072")
    a("s_add_u32 s58, s58, 16384")
    a("s_add_u32 s59, s58, 12288")
    if "norot" in OPTS:
        a("s_mov_b32 s55, 0")
    else:
        a("s_and_b32 s55, s48, 7")
    a("s_lshl_b32 s60, s55, 7")
    a("s_mul_i32 s61, s55, %d" % (64 * 2752))
    a("s_lshl_b32 s62, s56, 10")
    a("s_waitcnt lgkmcnt(0)")
    srd(a, sX, 4, X_BYTES)
    srd(a, sWG, 6, W_BYTES)
    srd(a, sWU, 8, W_BYTES)
    srd(a, sWD, 10, W_BYTES)
    srd(a, sDBG, 14, 256)

    def dma(st):
        if "nodma" in OPTS:
            return
        b = (st % 4) * STG
        a("s_add_u32 m0, s57, %d" % b)
        a("s_nop 0")
        for jj in range(4):
            a.vmem("buffer_load_dwordx4 v%d, s[%d:%d], s60 offen offset:%d lds" % (vXo + jj, sX, sX + 3, 1024 * jj), ("d", st))
        a("s_add_u32 m0, s58, %d" % b)
        a("s_nop 0")
        for jj in range(3):
            a.vmem("buffer_load_dwordx4 v%d, s[%d:%d], s61 offen offset:%d lds" % (vWgo + jj, sWG, sWG + 3, 1024 * jj), ("d", st))
        a("s_add_u32 m0, s59, %d" % b)
        a("s_nop 0")
        for jj in range(3):
            a.vmem("buffer_load_dwordx4 v%d, s[%d:%d], s61 offen offset:%d lds" % (vWuo + jj, sWU, sWU + 3, 1024 * jj), ("d", st))
        a("s_add_u32 s55, s55, 1")
        a("s_and_b32 s55, s55, 7")
        a("s_lshl_b32 s60, s55, 7")
        a("s_mul_i32 s61, s55, %d" % (64 * 2752))

    def wdpre(t, slot):
        for reg in range(4):
            a("s_add_u32 m0, s62, %d" % (reg * STG + slot * 4096))
            a("s_mov_b32 s63, %d" % ((352 * reg + 32 * t) * 1024))
            a.vmem("buffer_load_dwordx4 v%d, s[%d:%d], s63 offen lds" % (vWd, sWD, sWD + 3), ("p", t))

    a("s_cmp_ge_u32 s49, 15")
    a("s_cbranch_scc1 LD_nop1")
    stamp(a, 1)
    dma(0)
    dma(1)
    a.wait(vm=[("d", 0)])
    a("s_barrier")
    stamp(a, 2)
    dma(2)
    dma(3)
    for st in range(NST - 1):
        a.wait(vm=[("d", st + 1)])
        a("s_barrier")
        if st + 4 < NST:
            dma(st + 4)
    a("s_barrier")
    a.label("LD_nop1")
    a.vm = []
    stamp(a, 3)
    srd(a, sH, 16, H_BYTES)
    wdpre(10, 0)
    for t in range(1, 1 + NPRE):
        wdpre(t, t)
    a.wait(vm=[("p", 10)])
    a("s_barrier")
    stamp(a, 4)
    a("s_mov_b32 s45, s62")
    p2_setup(a)
    a("s_barrier")
    a("s_mov_b32 s46, s62")
    a("s_mov_b32 s47, s63")
    a("s_mov_b32 s62, s45")
    wdpre(0, 0)
    for t in range(1 + NPRE, 10):
        wdpre(t, t)
    a("s_mov_b32 s62, s46")
    a("s_mov_b32 s63, s47")
    a.wait(vm_all=True)
    stamp(a, 5)
    a("s_cmp_lg_u32 s50, 4")
    a("s_cbranch_scc1 P2_main")
    srd(a, sDBG, 14, 256)
    a("s_lshr_b32 s58, s51, 1")
    a("s_lshl_b32 s58, s58, 4")
    a("v_mov_b32 v3, s58")
    a("s_mov_b32 s59, 0")
    a("s_mov_b64 exec, 1")
    a.label("LD_poll")
    a("buffer_load_dwordx4 v[4:7], v3, s[%d:%d], 0 offen sc1" % (sDBG, sDBG + 3))
    a("s_waitcnt vmcnt(0)")
    a("v_and_b32 v4, v4, v5")
    a("v_or_b32 v7, 0x01000000, v7")
    a("v_and_b32 v6, v6, v7")
    a("v_and_b32 v4, v4, v6")
    a("s_add_u32 s59, s59, 1")
    a("v_readfirstlane_b32 s60, v4")
    a("s_nop 3")
    a("s_cmp_eq_u32 s60, 0x01010101")
    a("s_cbranch_scc1 LD_done")
    a("s_cmp_ge_u32 s59, 0x400000")
    a("s_cbranch_scc1 LD_done")
    a("s_sleep 1")
    a("s_branch LD_poll")
    a.label("LD_done")
    a("s_mov_b64 exec, -1")
    p2_main(a)
    a.label("L_end")
    a("s_endpgm")
    return a.text()


HEADER = """; Kernarg layout for this problem (56 bytes, ptrs only, base s[0:1]):
; @launch grid=(256,1,1) block=(512,1,1) lds=163840
.amdgcn_target "amdgcn-amd-amdhsa--gfx950"
.text
.globl standalone__swiglu_ffn__prompt_kernel
.p2align 8
.type standalone__swiglu_ffn__prompt_kernel,@function
"""

KD = """.section .rodata,"a"
.p2align 6
.amdhsa_kernel standalone__swiglu_ffn__prompt_kernel
  .amdhsa_next_free_vgpr 256
  .amdhsa_next_free_sgpr 102
  .amdhsa_accum_offset 256
  .amdhsa_group_segment_fixed_size 0
  .amdhsa_kernarg_size 56
  .amdhsa_user_sgpr_count 2
  .amdhsa_user_sgpr_kernarg_segment_ptr 1
  .amdhsa_system_sgpr_workgroup_id_x 1
.end_amdhsa_kernel
"""


def main():
    out = HEADER + gen() + KD
    path = sys.argv[1] if len(sys.argv) > 1 else "standalone__swiglu_ffn__prompt.s"
    open(path, "w").write(out)


main()
```

```python
import sys

M, D, F = 2048, 512, 1376
KB16 = F // 16
H_BYTES = 0x1000000
FLAG_OFF = 0x800000
X_BYTES = M * D * 2
W_BYTES = D * F * 2
OUT_BYTES = M * D * 2

OPTS = set(sys.argv[2:])
TS = "ts" in OPTS
HLD = " sc1"
HST = " sc1"


class Asm:
    def __init__(self):
        self.lines = []
        self.vm = []
        self.lg = []

    def __call__(self, s):
        self.lines.append("    " + s)

    def label(self, l):
        self.lines.append(l + ":")

    def vmem(self, s, tag):
        self(s)
        self.vm.append(tag)
        assert len(self.vm) <= 63, "too many vmem outstanding"

    def lds(self, s, tag):
        self(s)
        self.lg.append(tag)

    def _need(self, q, tags):
        idx = -1
        for i, t in enumerate(q):
            if t in tags:
                idx = i
        if idx < 0:
            return None
        return len(q) - 1 - idx

    def wait(self, vm=(), lg=(), vm_all=False, lg_all=False):
        parts = []
        if vm_all:
            parts.append("vmcnt(0)")
            self.vm = []
        else:
            n = self._need(self.vm, set(vm))
            if n is not None:
                parts.append("vmcnt(%d)" % n)
                self.vm = self.vm[len(self.vm) - n:] if n else []
        if lg_all:
            if self.lg:
                parts.append("lgkmcnt(0)")
                self.lg = []
        else:
            n = self._need(self.lg, set(lg))
            if n is not None:
                n = min(n, 15)
                parts.append("lgkmcnt(%d)" % n)
                self.lg = self.lg[len(self.lg) - n:] if n else []
        if parts:
            self("s_waitcnt " + " ".join(parts))

    def text(self):
        return "\n".join(self.lines) + "\n"


def vr(a, n):
    return "v[%d:%d]" % (a, a + n - 1)


def srd(a, dst, src, sz):
    a("s_mov_b32 s%d, s%d" % (dst, src))
    a("s_and_b32 s%d, s%d, 0xffff" % (dst + 1, src + 1))
    a("s_mov_b32 s%d, %d" % (dst + 2, sz))
    a("s_mov_b32 s%d, 0x00020000" % (dst + 3))


def stamp(a, i, cyc=False):
    if not TS:
        return
    a("%s s[%d:%d]" % ("s_memtime" if cyc else "s_memrealtime", 64 + 2 * i, 65 + 2 * i))
    a("s_waitcnt lgkmcnt(0)")
    a.lg = []


def stamp_store(a, kidx, wave, endlabel):
    a("s_memrealtime s[78:79]")
    a("s_memtime s[94:95]")
    a("s_waitcnt lgkmcnt(0)")
    a("s_cmp_lg_u32 s50, %d" % wave)
    a("s_cbranch_scc1 %s" % endlabel)
    a("s_mov_b64 exec, -1")
    a("s_mov_b32 s96, s16")
    a("s_and_b32 s97, s17, 0xffff")
    a("s_mov_b32 s98, 0x2000000")
    a("s_mov_b32 s99, 0x00020000")
    a("s_lshl_b32 s100, s2, 7")
    a("s_add_u32 s100, s100, %d" % ((16 << 20) + kidx * 256 * 128))
    a("v_mov_b32 v2, 0")
    for i in range(16):
        a("v_mov_b32 v4, s%d" % (64 + 2 * i))
        a("v_mov_b32 v5, s%d" % (65 + 2 * i))
        a("buffer_store_dwordx2 v[4:5], v2, s[96:99], s100 offen offset:%d" % (8 * i))
        a("s_nop 2")


STG = 40960
NST = 8
sX, sWG, sWU, sWD, sOUT, sH, sDBG = 20, 24, 28, 32, 36, 40, 44

NIT = 11
PDH = 4
ACC2 = 224
W10 = 208
WF = [176, 192]
HR = 88
vH, vA = 24, 26


def p2_setup(a):
    srd(a, sOUT, 12, OUT_BYTES)
    a("s_and_b32 s56, s50, 3")
    a("s_lshr_b32 s57, s50, 2")
    a("s_lshl_b32 s58, s51, 1")
    a("s_add_u32 s59, s58, s57")
    a("s_mul_i32 s59, s59, 86")
    a("s_mul_i32 s61, s56, 22")
    a("s_add_u32 s59, s59, s61")
    a("s_lshl_b32 s59, s59, 10")
    a("v_lshlrev_b32 v3, 4, v1")
    a("v_add_u32 v%d, s59, v3" % vH)
    a("s_mul_i32 s62, s56, %d" % STG)
    a("s_cmp_eq_u32 s56, 3")
    a("s_cselect_b32 s63, 0, %d" % (10 * 2048))
    a("s_and_b32 s58, s56, 1")
    a("s_lshr_b32 s59, s56, 1")
    a("v_lshrrev_b32 v3, 5, v1")
    a("v_bfe_u32 v4, v1, 2, 2")
    a("v_lshl_add_u32 v3, v3, 2, v4")
    a("v_lshlrev_b32 v3, 7, v3")
    a("v_bfe_u32 v4, v1, 3, 1")
    a("v_xor_b32 v4, s58, v4")
    a("v_lshl_add_u32 v3, v4, 6, v3")
    a("v_bfe_u32 v4, v1, 4, 1")
    a("v_xor_b32 v4, s59, v4")
    a("v_lshl_add_u32 v3, v4, 5, v3")
    a("v_and_b32 v4, 3, v1")
    a("v_lshl_add_u32 v3, v4, 3, v3")
    a("v_add_u32 v%d, s62, v3" % vA)
    a("v_xor_b32 v%d, 64, v%d" % (vA + 1, vA))
    for ks in range(2):
        for da in range(2):
            for half in range(2):
                a("ds_read_b64_tr_b16 %s, v%d offset:%d" % (vr(W10 + (ks * 2 + da) * 4 + 2 * half, 2), vA + da, ks * 2048 + half * 1024))
    a("s_waitcnt lgkmcnt(0)")
    a.lg = []
    P2S[0] += 1
    a("s_cmp_lg_u32 s56, 3")
    a("s_cbranch_scc1 P2S_%d" % P2S[0])
    for j in range(16):
        a("v_mov_b32 v%d, 0" % (W10 + j))
    a.label("P2S_%d" % P2S[0])


P2S = [0]


def p2_main(a, pre_vm):
    a.label("P2_main")
    a.vm = list(pre_vm)
    a.lg = []
    a("s_barrier")
    stamp(a, 5)
    units = [10] + list(range(1, 10)) + [0]

    def hloads(t):
        if t == NIT - 1:
            so = "s63"
        else:
            a("s_mov_b32 s58, %d" % (t * 2048))
            so = "s58"
        for ks in range(2):
            a.vmem("buffer_load_dwordx4 %s, v%d, s[%d:%d], %s offen offset:%d%s" % (
                vr(HR + t * 8 + ks * 4, 4), vH, sH, sH + 3, so, 1024 * ks, HLD), ("h", t))

    def trreads(t, f):
        l = []
        for ks in range(2):
            for da in range(2):
                for half in range(2):
                    l.append((lambda ks=ks, da=da, half=half: a.lds("ds_read_b64_tr_b16 %s, v%d offset:%d" % (
                        vr(f + (ks * 2 + da) * 4 + 2 * half, 2), vA + da, t * 4096 + ks * 2048 + half * 1024), ("t", t, ks, da))))
        return l

    for i in range(PDH):
        hloads(units[i])
    for i, t in enumerate(units):
        f = W10 if t == 10 else WF[i % 2]
        rd = []
        if i + 1 < NIT:
            rd = trreads(units[i + 1], WF[(i + 1) % 2])
        a.wait(vm=[("h", t)])
        n = 0
        for ks in range(2):
            for da in range(2):
                a.wait(lg=[("t", t, ks, da)])
                c = vr(ACC2 + da * 16, 16)
                a("v_mfma_f32_32x32x16_bf16 %s, %s, %s, %s" % (c, vr(f + (ks * 2 + da) * 4, 4), vr(HR + t * 8 + ks * 4, 4),
                                                               "0" if (i == 0 and ks == 0) else c))
                if rd:
                    rd[2 * n]()
                    rd[2 * n + 1]()
                n += 1
            if ks == 0 and i + PDH < NIT:
                hloads(units[i + PDH])
        if i == NIT - 4:
            a.wait(vm=["p0"])
            a("s_barrier")
        if i == NIT - 2:
            a.wait(lg_all=True)
            a("s_barrier")
    stamp(a, 6)
    a("v_lshlrev_b32 v3, 4, v1")
    a("s_lshl_b32 s58, s57, 13")
    a("v_add_u32 v3, s58, v3")
    a("v_add_u32 v4, s62, v3")
    for x in range(1, 4):
        a("s_xor_b32 s58, s56, %d" % x)
        a("s_mul_i32 s58, s58, %d" % STG)
        a("v_add_u32 v%d, s58, v3" % (4 + x))
    a("s_nop 7")
    for p in range(1, 4):
        c = ACC2 + (p & 1) * 16 + (p >> 1) * 8
        for j in range(2):
            a.lds("ds_write_b128 v4, %s offset:%d" % (vr(c + 4 * j, 4), (p - 1) * 2048 + j * 1024), "r")
    a.wait(lg_all=True)
    a("s_barrier")
    for x in range(1, 4):
        for j in range(2):
            a.lds("ds_read_b128 %s, v%d offset:%d" % (vr(64 + (x - 1) * 8 + 4 * j, 4), 4 + x, (x - 1) * 2048 + j * 1024), ("q", x))
    a("s_lshl_b32 s58, s51, 6")
    a("s_lshl_b32 s59, s57, 5")
    a("s_add_u32 s58, s58, s59")
    a("v_and_b32 v3, 31, v1")
    a("v_add_u32 v3, s58, v3")
    a("v_lshlrev_b32 v3, 10, v3")
    a("s_lshl_b32 s58, s52, 7")
    a("s_and_b32 s59, s56, 1")
    a("s_lshl_b32 s59, s59, 6")
    a("s_add_u32 s58, s58, s59")
    a("s_lshr_b32 s59, s56, 1")
    a("s_lshl_b32 s59, s59, 5")
    a("s_add_u32 s58, s58, s59")
    a("v_add_u32 v3, s58, v3")
    a("v_lshrrev_b32 v8, 5, v1")
    a("v_lshl_add_u32 v3, v8, 4, v3")
    for x in range(1, 4):
        a.wait(lg=[("q", x)])
        for j in range(8):
            a("v_add_f32 v%d, v%d, v%d" % (ACC2 + j, ACC2 + j, 64 + (x - 1) * 8 + j))
    for j in range(4):
        a("v_cvt_pk_bf16_f32 v%d, v%d, v%d" % (32 + j, ACC2 + 2 * j, ACC2 + 2 * j + 1))
    a("s_nop 1")
    a("v_permlane32_swap_b32 v32, v34")
    a("v_permlane32_swap_b32 v33, v35")
    a("buffer_store_dwordx4 v[32:35], v3, s[%d:%d], 0 offen" % (sOUT, sOUT + 3))
    if TS:
        a("s_waitcnt vmcnt(0)")
        a("s_cmp_eq_u32 s50, 4")
        a("s_cbranch_scc1 TS_l")
        stamp_store(a, 0, 0, "L_end")
        a("s_endpgm")
        a.label("TS_l")
        stamp_store(a, 1, 4, "L_end")


def getnonce(a, tag):
    a("s_mov_b32 s59, 0")
    a.label("C_gn" + tag)
    a("v_readfirstlane_b32 s60, v246")
    a("s_nop 3")
    a("s_cmp_lg_u32 s60, 0")
    a("s_cbranch_scc1 C_gnd" + tag)
    a("s_add_u32 s59, s59, 1")
    a("s_cmp_ge_u32 s59, 0x400000")
    a("s_cbranch_scc1 C_gnd" + tag)
    a("s_sleep 8")
    a("buffer_load_dwordx2 v[246:247], v248, s[%d:%d], 0 offen sc1" % (sDBG, sDBG + 3))
    a("s_waitcnt vmcnt(0)")
    a("s_branch C_gn" + tag)
    a.label("C_gnd" + tag)


def poll(a):
    a("s_lshr_b32 s58, s51, 1")
    a("s_lshl_b32 s58, s58, 8")
    a("s_add_u32 s58, s58, %d" % FLAG_OFF)
    a("v_lshlrev_b32 v3, 3, v1")
    a("v_add_u32 v3, s58, v3")
    a("s_mov_b32 s59, 0")
    a("s_mov_b64 exec, 0x7fff")
    NP = 2
    for k in range(NP - 1):
        a("buffer_load_dwordx2 v[%d:%d], v3, s[%d:%d], 0 offen sc1" % (32 + 2 * k, 33 + 2 * k, sH, sH + 3))
        a("s_sleep 6")
    a.label("C_poll")
    for k in range(NP):
        kk = (k + NP - 1) % NP
        a("buffer_load_dwordx2 v[%d:%d], v3, s[%d:%d], 0 offen sc1" % (32 + 2 * kk, 33 + 2 * kk, sH, sH + 3))
        a("s_waitcnt vmcnt(%d)" % (NP - 1))
        a("v_cmp_eq_u64 vcc, v[%d:%d], v[246:247]" % (32 + 2 * k, 33 + 2 * k))
        a("s_add_u32 s59, s59, 1")
        a("s_nop 3")
        a("s_cmp_eq_u64 vcc, exec")
        a("s_cbranch_scc1 C_polled")
        a("s_sleep 6")
    a("s_cmp_ge_u32 s59, 0x400000")
    a("s_cbranch_scc0 C_poll")
    a.label("C_polled")
    a("s_waitcnt vmcnt(0)")
    a("s_mov_b64 exec, -1")


def gen():
    a = Asm()
    a.label("standalone__swiglu_ffn__prompt_kernel")
    a("s_cmp_ge_u32 s2, 256")
    a("s_cbranch_scc1 L_end")
    stamp(a, 0)
    if TS:
        a("s_memtime s[92:93]")
    a("s_load_dwordx8 s[4:11], s[0:1], 0")
    a("s_load_dwordx4 s[12:15], s[0:1], 32")
    a("s_load_dwordx2 s[16:17], s[0:1], 48")
    a("v_lshrrev_b32 v2, 6, v0")
    a("v_and_b32 v1, 63, v0")
    a("s_and_b32 s53, s2, 7")
    a("v_readfirstlane_b32 s50, v2")
    a("s_lshr_b32 s54, s2, 3")
    a("s_and_b32 s48, s53, 1")
    a("s_lshl_b32 s48, s48, 3")
    a("s_and_b32 s55, s54, 7")
    a("s_add_u32 s48, s48, s55")
    a("s_lshr_b32 s49, s53, 1")
    a("s_lshl_b32 s49, s49, 2")
    a("s_lshr_b32 s55, s54, 3")
    a("s_add_u32 s49, s49, s55")
    a("s_lshl_b32 s51, s53, 2")
    a("s_and_b32 s55, s54, 3")
    a("s_add_u32 s51, s51, s55")
    a("s_lshr_b32 s52, s54, 2")
    a("s_cmp_ge_u32 s50, 4")
    a("s_cbranch_scc1 L_loader")

    ACC = 128
    def acc(mbk, fbk):
        return ACC + (mbk * 3 + fbk) * 16
    FR = [32, 52, 100, 224]
    vXa = [72, 88]
    vWa = [76, 92]
    if "nowarm" not in OPTS:
        a("s_waitcnt lgkmcnt(0)")
        srd(a, sX, 4, X_BYTES)
        srd(a, sWG, 6, W_BYTES)
        srd(a, sWU, 8, W_BYTES)
        srd(a, sWD, 10, W_BYTES)
        a("s_lshl_b32 s56, s2, 2")
        a("s_add_u32 s56, s56, s50")
        a("s_lshl_b32 s57, s56, 11")
        a("s_mul_i32 s58, s56, 1376")
        a("v_lshlrev_b32 v3, 4, v1")
        a("s_mov_b32 s59, 352")
        a("v_cmp_gt_u32 s[60:61], s59, v3")
        a("buffer_load_dwordx4 v[8:11], v3, s[%d:%d], s57 offen" % (sX, sX + 3))
        a("buffer_load_dwordx4 v[12:15], v3, s[%d:%d], s57 offen offset:1024" % (sX, sX + 3))
        for k, r in enumerate((sWG, sWU, sWD)):
            a("buffer_load_dwordx4 v[16:19], v3, s[%d:%d], s58 offen" % (r, r + 3))
        a("s_and_saveexec_b64 s[62:63], s[60:61]")
        for k, r in enumerate((sWG, sWU, sWD)):
            a("buffer_load_dwordx4 v[20:23], v3, s[%d:%d], s58 offen offset:1024" % (r, r + 3))
        a("s_mov_b64 exec, s[62:63]")
    a("s_waitcnt lgkmcnt(0)")
    srd(a, sDBG, 14, 256)
    a("s_or_b32 s56, s2, s50")
    a("s_cmp_lg_u32 s56, 0")
    a("s_cbranch_scc1 C_nononce")
    a("s_memrealtime s[56:57]")
    a("s_waitcnt lgkmcnt(0)")
    a("s_or_b32 s56, s56, 1")
    a("v_mov_b32 v4, s56")
    a("v_mov_b32 v5, s57")
    a("v_mov_b32 v6, 0")
    a("s_mov_b64 exec, 1")
    a("buffer_store_dwordx2 v[4:5], v6, s[%d:%d], 0 offen sc1" % (sDBG, sDBG + 3))
    a("s_mov_b64 exec, -1")
    a.label("C_nononce")
    a("v_mov_b32 v248, 0")
    a("s_cmp_ge_u32 s49, 15")
    a("s_cbranch_scc1 C_p2")
    a("s_and_b32 s56, s50, 1")
    a("s_lshr_b32 s57, s50, 1")
    a("v_and_b32 v3, 31, v1")
    a("s_lshl_b32 s58, s56, 6")
    a("v_add_u32 v3, s58, v3")
    a("v_lshlrev_b32 v3, 7, v3")
    a("v_lshrrev_b32 v4, 5, v1")
    a("v_bfe_u32 v5, v1, 1, 3")
    a("v_xor_b32 v4, v4, v5")
    for s in range(4):
        a("v_xor_b32 v6, %d, v4" % (2 * s))
        a("v_lshl_add_u32 v%d, v6, 4, v3" % (vXa[0] + s))
        a("v_add_u32 v%d, %d, v%d" % (vXa[1] + s, 2 * STG, vXa[0] + s))
    a("v_bfe_u32 v3, v1, 4, 1")
    a("v_lshrrev_b32 v4, 5, v1")
    a("v_bfe_u32 v5, v1, 2, 2")
    a("v_lshl_add_u32 v4, v4, 3, v5")
    a("v_mul_u32_u24 v4, 192, v4")
    a("v_and_b32 v5, 3, v1")
    a("v_lshl_add_u32 v4, v5, 3, v4")
    a("v_mul_u32_u24 v5, 12288, v3")
    a("v_add_u32 v4, v4, v5")
    a("v_add_u32 v4, 16384, v4")
    a("s_mul_i32 s58, s57, 3")
    for fbk in range(3):
        a("s_add_u32 s59, s58, %d" % fbk)
        a("v_xor_b32 v5, s59, v3")
        a("v_lshl_add_u32 v%d, v5, 5, v4" % (vWa[0] + fbk))
        a("v_add_u32 v%d, %d, v%d" % (vWa[1] + fbk, 2 * STG, vWa[0] + fbk))
    a("s_waitcnt lgkmcnt(0)")
    srd(a, sH, 16, H_BYTES)
    srd(a, sDBG, 14, 256)
    a("s_lshl_b32 s58, s48, 2")
    a("s_lshl_b32 s59, s56, 1")
    a("s_add_u32 s58, s58, s59")
    a("s_mul_i32 s58, s58, 86")
    a("s_mul_i32 s59, s49, 6")
    a("s_mul_i32 s60, s57, 3")
    a("s_add_u32 s59, s59, s60")
    a("s_add_u32 s58, s58, s59")
    a("s_lshl_b32 s58, s58, 10")
    a("v_lshlrev_b32 v3, 4, v1")
    a("v_add_u32 v3, s58, v3")
    a("v_add_u32 v4, %d, v3" % (86 * 1024))
    for fbk in range(3):
        a("s_add_u32 s60, s59, %d" % fbk)
        a("s_cmp_ge_u32 s60, 86")
        a("s_cselect_b32 s%d, 0x40000000, %d" % (53 + fbk, 1024 * fbk))
    a("s_mov_b32 s61, 0xbfb8aa3b")

    def rd_x(st, s, fs, mbk):
        b = st % 4
        return lambda: a.lds("ds_read_b128 %s, v%d offset:%d" % (vr(FR[fs] + 4 * mbk, 4), vXa[b // 2] + s, (b % 2) * STG + 4096 * mbk), ("f", st, s, "x", mbk))

    def rd_w(st, s, fs, fbk, half):
        b = st % 4
        return lambda: a.lds("ds_read_b64_tr_b16 %s, v%d offset:%d" % (vr(FR[fs] + 8 + 4 * fbk + 2 * half, 2), vWa[b // 2] + fbk, (b % 2) * STG + 3072 * s + 768 * half), ("f", st, s, "w", fbk))

    def reads(st, s, fs):
        x = lambda m: rd_x(st, s, fs, m)
        w = lambda f, h: rd_w(st, s, fs, f, h)
        return [x(0), w(0, 0), w(0, 1), x(1), w(1, 0), w(1, 1), w(2, 0), w(2, 1)]

    def mfma(st, s, fs, fbk, mbk):
        f = FR[fs]
        tag = ("f", st, s)
        a.wait(lg=[tag + ("x", mbk), tag + ("w", fbk)])
        c = vr(acc(mbk, fbk), 16)
        a("v_mfma_f32_32x32x16_bf16 %s, %s, %s, %s" % (c, vr(f + 8 + 4 * fbk, 4), vr(f + 4 * mbk, 4), "0" if (st == 0 and s == 0) else c))

    def epi(fbk, mbk, t):
        c = acc(mbk, fbk)
        l = []
        for j in range(8):
            l.append(lambda j=j: a("v_mul_f32 v%d, s61, v%d" % (t + j, c + j)))
        for j in range(8):
            l.append(lambda j=j: a("v_exp_f32 v%d, v%d" % (t + j, t + j)))
        for j in range(8):
            l.append(lambda j=j: a("v_mul_f32 v%d, v%d, v%d" % (c + j, c + j, c + 8 + j)))
        for j in range(8):
            l.append(lambda j=j: a("v_add_f32 v%d, 1.0, v%d" % (t + j, t + j)))
        for j in range(8):
            l.append(lambda j=j: a("v_rcp_f32 v%d, v%d" % (t + j, t + j)))
        l.append(lambda: a("s_nop 0"))
        for j in range(8):
            l.append(lambda j=j: a("v_mul_f32 v%d, v%d, v%d" % (t + j, t + j, c + j)))
        for j in range(4):
            l.append(lambda j=j: a("v_cvt_pk_bf16_f32 v%d, v%d, v%d" % (t + 8 + j, t + 2 * j, t + 2 * j + 1)))
        l.append(lambda: a("buffer_store_dwordx4 %s, v%d, s[%d:%d], s%d offen%s" % (vr(t + 8, 4), 3 + mbk, sH, sH + 3, 53 + fbk, HST)))
        return l

    order = [(0, 0), (0, 1), (1, 0), (1, 1), (2, 0), (2, 1)]
    stamp(a, 1)
    a("s_barrier")
    stamp(a, 2)
    stamp(a, 10, True)
    for r in reads(0, 0, 0):
        r()
    fs = 0
    for st in range(NST - 1):
        if st == 4:
            a("s_cmp_lg_u32 s50, 0")
            a("s_cbranch_scc1 C_nn2")
            a("buffer_load_dwordx2 v[246:247], v248, s[%d:%d], 0 offen sc1" % (sDBG, sDBG + 3))
            a.label("C_nn2")
        for s in range(4):
            if s < 3:
                rd = reads(st, s + 1, fs ^ 1)
                sched = {0: rd[0:3], 1: rd[3:6], 2: rd[6:8]}
                for i, (fbk, mbk) in enumerate(order):
                    mfma(st, s, fs, fbk, mbk)
                    for r in sched.get(i, []):
                        r()
            else:
                rd = reads(st + 1, 0, fs ^ 1)
                for i, (fbk, mbk) in enumerate(order):
                    mfma(st, s, fs, fbk, mbk)
                    if i == 1:
                        a.wait(lg_all=True)
                        a("s_barrier")
                        for r in rd[0:3]:
                            r()
                    if i == 2:
                        for r in rd[3:6]:
                            r()
                    if i == 3:
                        for r in rd[6:8]:
                            r()
                    if st == NST - 2 and i >= 4:
                        sets = [fs ^ 1, fs, 2, 3]
                        ss = i - 3
                        if ss == 2:
                            rd_x(NST - 1, 2, sets[2], 0)(); rd_w(NST - 1, 2, sets[2], 0, 0)(); rd_w(NST - 1, 2, sets[2], 0, 1)()
                            rd_x(NST - 1, 3, sets[3], 0)(); rd_w(NST - 1, 3, sets[3], 0, 0)(); rd_w(NST - 1, 3, sets[3], 0, 1)()
            fs ^= 1
    st = NST - 1
    sets = [fs, fs ^ 1, 2, 3]
    pend = [rd_x(st, 1, sets[1], 0), rd_w(st, 1, sets[1], 0, 0), rd_w(st, 1, sets[1], 0, 1)]
    pend += [rd_x(st, s, sets[s], 1) for s in (1, 2, 3)]
    for f_ in (1, 2):
        for s in (1, 2, 3):
            pend += [rd_w(st, s, sets[s], f_, 0), rd_w(st, s, sets[s], f_, 1)]
    evq = []
    TMP = [8, 20]
    a("s_waitcnt vmcnt(0)")
    nm = 0
    for ti, (fbk, mbk) in enumerate(order):
        for s in ([0, 2, 3, 1] if ti == 0 else range(4)):
            mfma(st, s, sets[s], fbk, mbk)
            nm += 1
            lastline = len(a.lines)
            for _ in range(3):
                if pend:
                    pend.pop(0)()
            if nm == 9:
                assert not pend
                a.wait(lg_all=True)
                a("s_barrier")
            budget = 5
            while evq and budget > 0 and len(a.lines) >= evq[0][0]:
                evq.pop(0)[1]()
                budget -= 1
        evq += [(lastline + 13, th) for th in epi(fbk, mbk, TMP[ti % 2])]
    stamp(a, 3)
    stamp(a, 11, True)
    while evq:
        if len(a.lines) < evq[0][0]:
            a("s_nop %d" % min(15, evq[0][0] - len(a.lines)))
            evq = [(0, th) for _, th in evq]
        evq.pop(0)[1]()
    stamp(a, 4)
    a("s_barrier")
    a("s_waitcnt vmcnt(0)")
    stamp(a, 8)
    a("s_barrier")
    stamp(a, 9)
    a("s_cmp_lg_u32 s50, 0")
    a("s_cbranch_scc1 C_p2b")
    getnonce(a, "a")
    a("s_lshl_b32 s58, s48, 8")
    a("s_lshl_b32 s59, s49, 3")
    a("s_add_u32 s58, s58, s59")
    a("s_add_u32 s58, s58, %d" % FLAG_OFF)
    a("v_mov_b32 v3, s58")
    a("s_mov_b64 exec, 1")
    a("buffer_store_dwordx2 v[246:247], v3, s[%d:%d], 0 offen sc1" % (sH, sH + 3))
    a("s_mov_b64 exec, -1")
    a("s_branch C_p2b")
    a.label("C_p2")
    a("s_waitcnt vmcnt(0) lgkmcnt(0)")
    srd(a, sH, 16, H_BYTES)
    a("s_barrier")
    a("s_cmp_lg_u32 s50, 0")
    a("s_cbranch_scc1 C_p2b")
    a("v_mov_b32 v246, 0")
    a("v_mov_b32 v247, 0")
    getnonce(a, "b")
    a.label("C_p2b")
    p2_setup(a)
    a("s_barrier")
    a("s_cmp_lg_u32 s50, 0")
    a("s_cbranch_scc1 P2_main")
    poll(a)
    a("s_branch P2_main")

    a.label("L_loader")
    a.vm = []
    a.lg = []
    vXo, vWgo, vWuo, vWd = 8, 12, 15, 18
    a("s_sub_u32 s56, s50, 4")
    a("v_lshrrev_b32 v3, 3, v1")
    a("v_and_b32 v4, 7, v1")
    a("v_lshrrev_b32 v5, 4, v1")
    a("s_lshl_b32 s58, s48, 7")
    a("s_lshl_b32 s59, s56, 5")
    a("s_add_u32 s58, s58, s59")
    a("v_add_u32 v6, s58, v3")
    a("v_lshlrev_b32 v6, 10, v6")
    for jj in range(4):
        a("v_add_u32 v7, %d, v5" % (4 * jj))
        a("v_and_b32 v7, 7, v7")
        a("v_xor_b32 v7, v7, v4")
        a("v_lshl_add_u32 v%d, v7, 4, v6" % (vXo + jj))
        if jj:
            a("v_add_u32 v%d, %d, v%d" % (vXo + jj, jj * (8192 - 1024), vXo + jj))
    a("s_mul_i32 s58, s56, 192")
    a("s_mul_i32 s59, s49, 192")
    a("s_mov_b32 s60, 43691")
    a("s_mov_b32 s61, 2752")
    for jj in range(3):
        a("v_add_u32 v6, s58, v1")
        if jj:
            a("v_add_u32 v6, %d, v6" % (64 * jj))
        a("v_mul_lo_u32 v7, v6, s60")
        a("v_lshrrev_b32 v7, 19, v7")
        a("v_mul_u32_u24 v19, 12, v7")
        a("v_sub_u32 v19, v6, v19")
        a("v_mul_lo_u32 v7, v7, s61")
        a("v_add_u32 v7, s59, v7")
        if jj:
            a("v_subrev_u32 v7, %d, v7" % (1024 * jj))
        a("v_lshl_add_u32 v%d, v19, 4, v7" % (vWgo + jj))
        a("v_xor_b32 v19, 2, v19")
        a("v_lshl_add_u32 v%d, v19, 4, v7" % (vWuo + jj))
    a("s_lshl_b32 s58, s56, 3")
    a("v_add_u32 v6, s58, v3")
    a("v_lshlrev_b32 v6, 10, v6")
    a("s_lshl_b32 s58, s52, 7")
    a("v_add_u32 v6, s58, v6")
    a("v_bfe_u32 v7, v1, 4, 1")
    a("v_lshlrev_b32 v7, 2, v7")
    a("v_xor_b32 v7, v7, v4")
    a("v_lshl_add_u32 v%d, v7, 4, v6" % vWd)
    a("s_lshl_b32 s57, s56, 12")
    a("s_mul_i32 s58, s56, 3072")
    a("s_add_u32 s58, s58, 16384")
    a("s_add_u32 s59, s58, 12288")
    a("s_mov_b32 s60, 0")
    a("s_mov_b32 s61, 0")
    a("s_lshl_b32 s18, s56, 10")
    a("s_waitcnt lgkmcnt(0)")
    srd(a, sX, 4, X_BYTES)
    srd(a, sWG, 6, W_BYTES)
    srd(a, sWU, 8, W_BYTES)
    srd(a, sWD, 10, W_BYTES)
    srd(a, sH, 16, H_BYTES)

    def dma(st):
        b = (st % 4) * STG
        a("s_add_u32 m0, s57, %d" % b)
        a("s_nop 0")
        for jj in range(4):
            a.vmem("buffer_load_dwordx4 v%d, s[%d:%d], s60 offen offset:%d lds" % (vXo + jj, sX, sX + 3, 1024 * jj), ("d", st))
        a("s_add_u32 m0, s58, %d" % b)
        a("s_nop 0")
        for jj in range(3):
            a.vmem("buffer_load_dwordx4 v%d, s[%d:%d], s61 offen offset:%d lds" % (vWgo + jj, sWG, sWG + 3, 1024 * jj), ("d", st))
        a("s_add_u32 m0, s59, %d" % b)
        a("s_nop 0")
        for jj in range(3):
            a.vmem("buffer_load_dwordx4 v%d, s[%d:%d], s61 offen offset:%d lds" % (vWuo + jj, sWU, sWU + 3, 1024 * jj), ("d", st))
        a("s_add_u32 s60, s60, 128")
        a("s_add_u32 s61, s61, %d" % (64 * 2752))

    def wd1(reg, t, slot):
        a("s_add_u32 m0, s18, %d" % (reg * STG + slot * 4096))
        a("s_mov_b32 s19, %d" % ((352 * reg + 32 * t) * 1024))
        a.vmem("buffer_load_dwordx4 v%d, s[%d:%d], s19 offen lds" % (vWd, sWD, sWD + 3), ("p", reg, t))

    def l2warm():
        a("s_lshr_b32 s19, s2, 3")
        a("s_lshl_b32 s19, s19, 2")
        a("s_add_u32 s19, s19, s56")
        a("v_lshlrev_b32 v20, 4, v1")
        a("s_mul_i32 s3, s19, 3")
        a("s_add_u32 s3, s3, 1056")
        a("s_lshl_b32 s3, s3, 10")
        for i in range(3):
            a.vmem("buffer_load_dwordx4 v[%d:%d], v20, s[%d:%d], s3 offen offset:%d" % (28 + 4 * i, 31 + 4 * i, sWD, sWD + 3, 1024 * i), "j")
        a("s_lshr_b32 s3, s19, 5")
        a("s_mul_i32 s3, s3, 352")
        a("s_and_b32 s19, s19, 31")
        a("s_add_u32 s3, s3, s19")
        a("s_lshl_b32 s3, s3, 10")
        a.vmem("buffer_load_dwordx4 v[40:43], v20, s[%d:%d], s3 offen" % (sWD, sWD + 3), "j")

    def wdreg(reg):
        if reg < 3:
            wd1(reg, 10, 0)
            for t in range(1, 10):
                wd1(reg, t, t)
        else:
            for t in list(range(1, 10)) + [0]:
                wd1(reg, t, t)

    a("s_cmp_ge_u32 s49, 15")
    a("s_cbranch_scc1 LD_nop1")
    stamp(a, 1)
    dma(0)
    dma(1)
    a.wait(vm=[("d", 0)])
    a("s_barrier")
    stamp(a, 2)
    dma(2)
    dma(3)
    for st in range(NST - 1):
        a.wait(vm=[("d", st + 1)])
        a("s_barrier")
        if st + 4 < NST:
            dma(st + 4)
            if st + 4 == NST - 1 and "nol2w" not in OPTS:
                l2warm()
        else:
            wdreg(st - 4)
    a("s_barrier")
    stamp(a, 3)
    a("s_barrier")
    wdreg(3)
    a.wait(vm=[("p", 2, 10)])
    a("s_branch LD_e")
    a.label("LD_nop1")
    a.vm = []
    for reg in range(4):
        wdreg(reg)
    a.wait(vm=[("p", 2, 10)])
    a.label("LD_e")
    a("s_barrier")
    stamp(a, 4)
    a.vm = ["old"] * 9 + [("p", 3, t) for t in list(range(1, 10)) + [0]]
    p2_setup(a)
    a("s_barrier")
    for reg in range(3):
        a("s_add_u32 m0, s18, %d" % (reg * STG))
        a("s_mov_b32 s19, %d" % (352 * reg * 1024))
        a.vmem("buffer_load_dwordx4 v%d, s[%d:%d], s19 offen lds" % (vWd, sWD, sWD + 3), "p0")
    a.wait(vm=[("p", 3, 0)])
    stamp(a, 8)
    p2_main(a, a.vm)
    a.label("L_end")
    a("s_endpgm")
    return a.text()


HEADER = """; Kernarg layout for this problem (56 bytes, ptrs only, base s[0:1]):
; @launch grid=(256,1,1) block=(512,1,1) lds=163840
.amdgcn_target "amdgcn-amd-amdhsa--gfx950"
.text
.globl standalone__swiglu_ffn__prompt_kernel
.p2align 8
.type standalone__swiglu_ffn__prompt_kernel,@function
"""

KD = """.section .rodata,"a"
.p2align 6
.amdhsa_kernel standalone__swiglu_ffn__prompt_kernel
  .amdhsa_next_free_vgpr 256
  .amdhsa_next_free_sgpr 102
  .amdhsa_accum_offset 256
  .amdhsa_group_segment_fixed_size 0
  .amdhsa_kernarg_size 56
  .amdhsa_user_sgpr_count 2
  .amdhsa_user_sgpr_kernarg_segment_ptr 1
  .amdhsa_system_sgpr_workgroup_id_x 1
.end_amdhsa_kernel
"""


def main():
    out = HEADER + gen() + KD
    path = sys.argv[1] if len(sys.argv) > 1 else "standalone__swiglu_ffn__prompt.s"
    open(path, "w").write(out)


main()
```

```python
import sys

M, D, F = 2048, 512, 1376
KB16 = F // 16
H_BYTES = 0x1000000
FLAG_OFF = 0x800000
X_BYTES = M * D * 2
W_BYTES = D * F * 2
OUT_BYTES = M * D * 2

OPTS = set(sys.argv[2:])
TS = "ts" in OPTS
HLD = " sc1"
HST = " sc1"


class Asm:
    def __init__(self):
        self.lines = []
        self.vm = []
        self.lg = []

    def __call__(self, s):
        self.lines.append("    " + s)

    def label(self, l):
        self.lines.append(l + ":")

    def vmem(self, s, tag):
        self(s)
        self.vm.append(tag)
        assert len(self.vm) <= 63, "too many vmem outstanding"

    def lds(self, s, tag):
        self(s)
        self.lg.append(tag)

    def _need(self, q, tags):
        idx = -1
        for i, t in enumerate(q):
            if t in tags:
                idx = i
        if idx < 0:
            return None
        return len(q) - 1 - idx

    def wait(self, vm=(), lg=(), vm_all=False, lg_all=False):
        parts = []
        if vm_all:
            parts.append("vmcnt(0)")
            self.vm = []
        else:
            n = self._need(self.vm, set(vm))
            if n is not None:
                parts.append("vmcnt(%d)" % n)
                self.vm = self.vm[len(self.vm) - n:] if n else []
        if lg_all:
            if self.lg:
                parts.append("lgkmcnt(0)")
                self.lg = []
        else:
            n = self._need(self.lg, set(lg))
            if n is not None:
                n = min(n, 15)
                parts.append("lgkmcnt(%d)" % n)
                self.lg = self.lg[len(self.lg) - n:] if n else []
        if parts:
            self("s_waitcnt " + " ".join(parts))

    def text(self):
        return "\n".join(self.lines) + "\n"


def vr(a, n):
    return "v[%d:%d]" % (a, a + n - 1)


def srd(a, dst, src, sz):
    a("s_mov_b32 s%d, s%d" % (dst, src))
    a("s_and_b32 s%d, s%d, 0xffff" % (dst + 1, src + 1))
    a("s_mov_b32 s%d, %d" % (dst + 2, sz))
    a("s_mov_b32 s%d, 0x00020000" % (dst + 3))


def stamp(a, i, cyc=False):
    if not TS:
        return
    a("%s s[%d:%d]" % ("s_memtime" if cyc else "s_memrealtime", 64 + 2 * i, 65 + 2 * i))
    a("s_waitcnt lgkmcnt(0)")
    a.lg = []


def stamp_store(a, kidx, wave, endlabel):
    a("s_memrealtime s[78:79]")
    a("s_memtime s[94:95]")
    a("s_waitcnt lgkmcnt(0)")
    a("s_cmp_lg_u32 s50, %d" % wave)
    a("s_cbranch_scc1 %s" % endlabel)
    a("s_mov_b64 exec, -1")
    if "dbgts" in OPTS:
        if kidx == 1:
            a("s_branch %s" % endlabel)
            return
        srd(a, sDBG, 14, 256)
        a("s_mov_b32 s100, 8")
        a("s_cmp_eq_u32 s2, 0")
        a("s_cbranch_scc1 TS_d")
        a("s_mov_b32 s100, 36")
        a("s_cmp_eq_u32 s2, 200")
        a("s_cbranch_scc0 %s" % endlabel)
        a.label("TS_d")
        a("v_mov_b32 v2, 0")
        for n, i in enumerate([0, 2, 3, 4, 9, 5, 7]):
            a("v_mov_b32 v4, s%d" % (64 + 2 * i))
            a("buffer_store_dword v4, v2, s[%d:%d], s100 offen offset:%d" % (sDBG, sDBG + 3, 4 * n))
            a("s_nop 2")
        return
    a("s_mov_b32 s96, s16")
    a("s_and_b32 s97, s17, 0xffff")
    a("s_mov_b32 s98, 0x2000000")
    a("s_mov_b32 s99, 0x00020000")
    a("s_lshl_b32 s100, s2, 7")
    a("s_add_u32 s100, s100, %d" % ((16 << 20) + kidx * 256 * 128))
    a("v_mov_b32 v2, 0")
    for i in range(16):
        a("v_mov_b32 v4, s%d" % (64 + 2 * i))
        a("v_mov_b32 v5, s%d" % (65 + 2 * i))
        a("buffer_store_dwordx2 v[4:5], v2, s[96:99], s100 offen offset:%d" % (8 * i))
        a("s_nop 2")


STG = 40960
NST = 8
sX, sWG, sWU, sWD, sOUT, sH, sDBG = 20, 24, 28, 32, 36, 40, 44

NIT = 11
PDH = 4
ACC2 = 224
W10 = 208
WF = [176, 192]
HR = 88
vH, vA = 24, 26


def p2_setup(a):
    srd(a, sOUT, 12, OUT_BYTES)
    a("s_and_b32 s56, s50, 3")
    a("s_lshr_b32 s57, s50, 2")
    a("s_lshl_b32 s58, s51, 1")
    a("s_add_u32 s59, s58, s57")
    a("s_mul_i32 s59, s59, 86")
    a("s_mul_i32 s61, s56, 22")
    a("s_add_u32 s59, s59, s61")
    a("s_lshl_b32 s59, s59, 10")
    a("v_lshlrev_b32 v3, 4, v1")
    a("v_add_u32 v%d, s59, v3" % vH)
    a("s_mul_i32 s62, s56, %d" % STG)
    a("s_cmp_eq_u32 s56, 3")
    a("s_cselect_b32 s63, 0, %d" % (10 * 2048))
    a("s_and_b32 s58, s56, 1")
    a("s_lshr_b32 s59, s56, 1")
    a("v_lshrrev_b32 v3, 5, v1")
    a("v_bfe_u32 v4, v1, 2, 2")
    a("v_lshl_add_u32 v3, v3, 2, v4")
    a("v_lshlrev_b32 v3, 7, v3")
    a("v_bfe_u32 v4, v1, 3, 1")
    a("v_xor_b32 v4, s58, v4")
    a("v_lshl_add_u32 v3, v4, 6, v3")
    a("v_bfe_u32 v4, v1, 4, 1")
    a("v_xor_b32 v4, s59, v4")
    a("v_lshl_add_u32 v3, v4, 5, v3")
    a("v_and_b32 v4, 3, v1")
    a("v_lshl_add_u32 v3, v4, 3, v3")
    a("v_add_u32 v%d, s62, v3" % vA)
    a("v_xor_b32 v%d, 64, v%d" % (vA + 1, vA))
    for ks in range(2):
        for da in range(2):
            for half in range(2):
                a("ds_read_b64_tr_b16 %s, v%d offset:%d" % (vr(W10 + (ks * 2 + da) * 4 + 2 * half, 2), vA + da, ks * 2048 + half * 1024))
    a("s_waitcnt lgkmcnt(0)")
    a.lg = []
    P2S[0] += 1
    a("s_cmp_lg_u32 s56, 3")
    a("s_cbranch_scc1 P2S_%d" % P2S[0])
    for j in range(16):
        a("v_mov_b32 v%d, 0" % (W10 + j))
    a.label("P2S_%d" % P2S[0])


P2S = [0]


def p2_main(a, pre_vm):
    a.label("P2_main")
    a.vm = list(pre_vm)
    a.lg = []
    a("s_barrier")
    stamp(a, 5)
    units = [10] + list(range(1, 10)) + [0]

    def hloads(t):
        if t == NIT - 1:
            so = "s63"
        else:
            a("s_mov_b32 s58, %d" % (t * 2048))
            so = "s58"
        for ks in range(2):
            a.vmem("buffer_load_dwordx4 %s, v%d, s[%d:%d], %s offen offset:%d%s" % (
                vr(HR + t * 8 + ks * 4, 4), vH, sH, sH + 3, so, 1024 * ks, HLD), ("h", t))

    def trreads(t, f):
        l = []
        for ks in range(2):
            for da in range(2):
                for half in range(2):
                    l.append((lambda ks=ks, da=da, half=half: a.lds("ds_read_b64_tr_b16 %s, v%d offset:%d" % (
                        vr(f + (ks * 2 + da) * 4 + 2 * half, 2), vA + da, t * 4096 + ks * 2048 + half * 1024), ("t", t, ks, da))))
        return l

    for i in range(PDH):
        hloads(units[i])
    for i, t in enumerate(units):
        f = W10 if t == 10 else WF[i % 2]
        rd = []
        if i + 1 < NIT:
            rd = trreads(units[i + 1], WF[(i + 1) % 2])
        a.wait(vm=[("h", t)])
        n = 0
        for ks in range(2):
            for da in range(2):
                a.wait(lg=[("t", t, ks, da)])
                c = vr(ACC2 + da * 16, 16)
                a("v_mfma_f32_32x32x16_bf16 %s, %s, %s, %s" % (c, vr(f + (ks * 2 + da) * 4, 4), vr(HR + t * 8 + ks * 4, 4),
                                                               "0" if (i == 0 and ks == 0) else c))
                if rd:
                    rd[2 * n]()
                    rd[2 * n + 1]()
                n += 1
            if ks == 0 and i + PDH < NIT:
                hloads(units[i + PDH])
        if i == NIT - 4:
            a.wait(vm=["p0"])
            a("s_barrier")
        if i == NIT - 2:
            a.wait(lg_all=True)
            a("s_barrier")
    stamp(a, 6)
    a("v_lshlrev_b32 v3, 4, v1")
    a("s_lshl_b32 s58, s57, 13")
    a("v_add_u32 v3, s58, v3")
    a("v_add_u32 v4, s62, v3")
    for x in range(1, 4):
        a("s_xor_b32 s58, s56, %d" % x)
        a("s_mul_i32 s58, s58, %d" % STG)
        a("v_add_u32 v%d, s58, v3" % (4 + x))
    a("s_nop 7")
    for p in range(1, 4):
        c = ACC2 + (p & 1) * 16 + (p >> 1) * 8
        for j in range(2):
            a.lds("ds_write_b128 v4, %s offset:%d" % (vr(c + 4 * j, 4), (p - 1) * 2048 + j * 1024), "r")
    a.wait(lg_all=True)
    a("s_barrier")
    for x in range(1, 4):
        for j in range(2):
            a.lds("ds_read_b128 %s, v%d offset:%d" % (vr(64 + (x - 1) * 8 + 4 * j, 4), 4 + x, (x - 1) * 2048 + j * 1024), ("q", x))
    a("s_lshl_b32 s58, s51, 6")
    a("s_lshl_b32 s59, s57, 5")
    a("s_add_u32 s58, s58, s59")
    a("v_and_b32 v3, 31, v1")
    a("v_add_u32 v3, s58, v3")
    a("v_lshlrev_b32 v3, 10, v3")
    a("s_lshl_b32 s58, s52, 7")
    a("s_and_b32 s59, s56, 1")
    a("s_lshl_b32 s59, s59, 6")
    a("s_add_u32 s58, s58, s59")
    a("s_lshr_b32 s59, s56, 1")
    a("s_lshl_b32 s59, s59, 5")
    a("s_add_u32 s58, s58, s59")
    a("v_add_u32 v3, s58, v3")
    a("v_lshrrev_b32 v8, 5, v1")
    a("v_lshl_add_u32 v3, v8, 4, v3")
    for x in range(1, 4):
        a.wait(lg=[("q", x)])
        for j in range(8):
            a("v_add_f32 v%d, v%d, v%d" % (ACC2 + j, ACC2 + j, 64 + (x - 1) * 8 + j))
    for j in range(4):
        a("v_cvt_pk_bf16_f32 v%d, v%d, v%d" % (32 + j, ACC2 + 2 * j, ACC2 + 2 * j + 1))
    a("s_nop 1")
    a("v_permlane32_swap_b32 v32, v34")
    a("v_permlane32_swap_b32 v33, v35")
    a("buffer_store_dwordx4 v[32:35], v3, s[%d:%d], 0 offen" % (sOUT, sOUT + 3))
    if TS:
        a("s_waitcnt vmcnt(0)")
        a("s_cmp_eq_u32 s50, 4")
        a("s_cbranch_scc1 TS_l")
        stamp_store(a, 0, 0, "L_end")
        a("s_endpgm")
        a.label("TS_l")
        stamp_store(a, 1, 4, "L_end")


def getnonce(a, tag):
    a("s_mov_b32 s59, 0")
    a.label("C_gn" + tag)
    a("v_readfirstlane_b32 s60, v246")
    a("s_nop 3")
    a("s_cmp_lg_u32 s60, 0")
    a("s_cbranch_scc1 C_gnd" + tag)
    a("s_add_u32 s59, s59, 1")
    a("s_cmp_ge_u32 s59, 0x400000")
    a("s_cbranch_scc1 C_gnd" + tag)
    a("s_sleep 8")
    a("buffer_load_dwordx2 v[246:247], v248, s[%d:%d], 0 offen sc1" % (sDBG, sDBG + 3))
    a("s_waitcnt vmcnt(0)")
    a("s_branch C_gn" + tag)
    a.label("C_gnd" + tag)


def poll(a):
    a("s_lshr_b32 s58, s51, 1")
    a("s_lshl_b32 s58, s58, 8")
    a("s_add_u32 s58, s58, %d" % FLAG_OFF)
    a("v_lshlrev_b32 v3, 3, v1")
    a("v_add_u32 v3, s58, v3")
    a("s_mov_b32 s59, 0")
    a("s_mov_b64 exec, 0x7fff")
    NP = 2
    for k in range(NP - 1):
        a("buffer_load_dwordx2 v[%d:%d], v3, s[%d:%d], 0 offen sc1" % (32 + 2 * k, 33 + 2 * k, sH, sH + 3))
        a("s_sleep 6")
    a.label("C_poll")
    for k in range(NP):
        kk = (k + NP - 1) % NP
        a("buffer_load_dwordx2 v[%d:%d], v3, s[%d:%d], 0 offen sc1" % (32 + 2 * kk, 33 + 2 * kk, sH, sH + 3))
        a("s_waitcnt vmcnt(%d)" % (NP - 1))
        a("v_cmp_eq_u64 vcc, v[%d:%d], v[246:247]" % (32 + 2 * k, 33 + 2 * k))
        a("s_add_u32 s59, s59, 1")
        a("s_nop 3")
        a("s_cmp_eq_u64 vcc, exec")
        a("s_cbranch_scc1 C_polled")
        a("s_sleep 6")
    a("s_cmp_ge_u32 s59, 0x400000")
    a("s_cbranch_scc0 C_poll")
    a.label("C_polled")
    a("s_waitcnt vmcnt(0)")
    a("s_mov_b64 exec, -1")


def gen():
    a = Asm()
    a.label("standalone__swiglu_ffn__prompt_kernel")
    a("s_cmp_ge_u32 s2, 256")
    a("s_cbranch_scc1 L_end")
    stamp(a, 0)
    if TS:
        a("s_memtime s[92:93]")
    a("s_load_dwordx8 s[4:11], s[0:1], 0")
    a("s_load_dwordx4 s[12:15], s[0:1], 32")
    a("s_load_dwordx2 s[16:17], s[0:1], 48")
    a("v_lshrrev_b32 v2, 6, v0")
    a("v_and_b32 v1, 63, v0")
    a("s_and_b32 s53, s2, 7")
    a("v_readfirstlane_b32 s50, v2")
    a("s_lshr_b32 s54, s2, 3")
    a("s_and_b32 s48, s53, 1")
    a("s_lshl_b32 s48, s48, 3")
    a("s_and_b32 s55, s54, 7")
    a("s_add_u32 s48, s48, s55")
    a("s_lshr_b32 s49, s53, 1")
    a("s_lshl_b32 s49, s49, 2")
    a("s_lshr_b32 s55, s54, 3")
    a("s_add_u32 s49, s49, s55")
    a("s_lshl_b32 s51, s53, 2")
    a("s_and_b32 s55, s54, 3")
    a("s_add_u32 s51, s51, s55")
    a("s_lshr_b32 s52, s54, 2")
    a("s_cmp_ge_u32 s50, 4")
    a("s_cbranch_scc1 L_loader")

    ACC = 128
    def acc(mbk, fbk):
        return ACC + (mbk * 3 + fbk) * 16
    FR = [32, 52, 100, 224]
    vXa = [72, 88]
    vWa = [76, 92]
    if "nowarm" not in OPTS:
        a("s_waitcnt lgkmcnt(0)")
        srd(a, sX, 4, X_BYTES)
        srd(a, sWG, 6, W_BYTES)
        srd(a, sWU, 8, W_BYTES)
        srd(a, sWD, 10, W_BYTES)
        a("s_lshl_b32 s56, s2, 2")
        a("s_add_u32 s56, s56, s50")
        a("s_lshl_b32 s57, s56, 11")
        a("s_mul_i32 s58, s56, 1376")
        a("v_lshlrev_b32 v3, 4, v1")
        a("s_mov_b32 s59, 352")
        a("v_cmp_gt_u32 s[60:61], s59, v3")
        a("buffer_load_dwordx4 v[8:11], v3, s[%d:%d], s57 offen" % (sX, sX + 3))
        a("buffer_load_dwordx4 v[12:15], v3, s[%d:%d], s57 offen offset:1024" % (sX, sX + 3))
        for k, r in enumerate((sWG, sWU, sWD)):
            a("buffer_load_dwordx4 v[16:19], v3, s[%d:%d], s58 offen" % (r, r + 3))
        a("s_and_saveexec_b64 s[62:63], s[60:61]")
        for k, r in enumerate((sWG, sWU, sWD)):
            a("buffer_load_dwordx4 v[20:23], v3, s[%d:%d], s58 offen offset:1024" % (r, r + 3))
        a("s_mov_b64 exec, s[62:63]")
    a("s_waitcnt lgkmcnt(0)")
    srd(a, sDBG, 14, 256)
    a("s_or_b32 s56, s2, s50")
    a("s_cmp_lg_u32 s56, 0")
    a("s_cbranch_scc1 C_nononce")
    a("s_memrealtime s[56:57]")
    a("s_waitcnt lgkmcnt(0)")
    a("s_or_b32 s56, s56, 1")
    a("v_mov_b32 v4, s56")
    a("v_mov_b32 v5, s57")
    a("v_mov_b32 v6, 0")
    a("s_mov_b64 exec, 1")
    a("buffer_store_dwordx2 v[4:5], v6, s[%d:%d], 0 offen sc1" % (sDBG, sDBG + 3))
    a("s_mov_b64 exec, -1")
    a.label("C_nononce")
    a("v_mov_b32 v248, 0")
    a("s_cmp_ge_u32 s49, 15")
    a("s_cbranch_scc1 C_p2")
    a("s_and_b32 s56, s50, 1")
    a("s_lshr_b32 s57, s50, 1")
    a("v_and_b32 v3, 31, v1")
    a("s_lshl_b32 s58, s56, 6")
    a("v_add_u32 v3, s58, v3")
    a("v_lshlrev_b32 v3, 7, v3")
    a("v_lshrrev_b32 v4, 5, v1")
    a("v_bfe_u32 v5, v1, 1, 3")
    a("v_xor_b32 v4, v4, v5")
    for s in range(4):
        a("v_xor_b32 v6, %d, v4" % (2 * s))
        a("v_lshl_add_u32 v%d, v6, 4, v3" % (vXa[0] + s))
        a("v_add_u32 v%d, %d, v%d" % (vXa[1] + s, 2 * STG, vXa[0] + s))
    a("v_bfe_u32 v3, v1, 4, 1")
    a("v_lshrrev_b32 v4, 5, v1")
    a("v_bfe_u32 v5, v1, 2, 2")
    a("v_lshl_add_u32 v4, v4, 3, v5")
    a("v_mul_u32_u24 v4, 192, v4")
    a("v_and_b32 v5, 3, v1")
    a("v_lshl_add_u32 v4, v5, 3, v4")
    a("v_mul_u32_u24 v5, 12288, v3")
    a("v_add_u32 v4, v4, v5")
    a("v_add_u32 v4, 16384, v4")
    a("s_mul_i32 s58, s57, 3")
    for fbk in range(3):
        a("s_add_u32 s59, s58, %d" % fbk)
        a("v_xor_b32 v5, s59, v3")
        a("v_lshl_add_u32 v%d, v5, 5, v4" % (vWa[0] + fbk))
        a("v_add_u32 v%d, %d, v%d" % (vWa[1] + fbk, 2 * STG, vWa[0] + fbk))
    a("s_waitcnt lgkmcnt(0)")
    srd(a, sH, 16, H_BYTES)
    srd(a, sDBG, 14, 256)
    a("s_lshl_b32 s58, s48, 2")
    a("s_lshl_b32 s59, s56, 1")
    a("s_add_u32 s58, s58, s59")
    a("s_mul_i32 s58, s58, 86")
    a("s_mul_i32 s59, s49, 6")
    a("s_mul_i32 s60, s57, 3")
    a("s_add_u32 s59, s59, s60")
    a("s_add_u32 s58, s58, s59")
    a("s_lshl_b32 s58, s58, 10")
    a("v_lshlrev_b32 v3, 4, v1")
    a("v_add_u32 v3, s58, v3")
    a("v_add_u32 v4, %d, v3" % (86 * 1024))
    for fbk in range(3):
        a("s_add_u32 s60, s59, %d" % fbk)
        a("s_cmp_ge_u32 s60, 86")
        a("s_cselect_b32 s%d, 0x40000000, %d" % (53 + fbk, 1024 * fbk))
    a("s_mov_b32 s61, 0xbfb8aa3b")

    def rd_x(st, s, fs, mbk):
        b = st % 4
        return lambda: a.lds("ds_read_b128 %s, v%d offset:%d" % (vr(FR[fs] + 4 * mbk, 4), vXa[b // 2] + s, (b % 2) * STG + 4096 * mbk), ("f", st, s, "x", mbk))

    def rd_w(st, s, fs, fbk, half):
        b = st % 4
        return lambda: a.lds("ds_read_b64_tr_b16 %s, v%d offset:%d" % (vr(FR[fs] + 8 + 4 * fbk + 2 * half, 2), vWa[b // 2] + fbk, (b % 2) * STG + 3072 * s + 768 * half), ("f", st, s, "w", fbk))

    def reads(st, s, fs):
        x = lambda m: rd_x(st, s, fs, m)
        w = lambda f, h: rd_w(st, s, fs, f, h)
        return [x(0), w(0, 0), w(0, 1), x(1), w(1, 0), w(1, 1), w(2, 0), w(2, 1)]

    def mfma(st, s, fs, fbk, mbk):
        f = FR[fs]
        tag = ("f", st, s)
        a.wait(lg=[tag + ("x", mbk), tag + ("w", fbk)])
        c = vr(acc(mbk, fbk), 16)
        a("v_mfma_f32_32x32x16_bf16 %s, %s, %s, %s" % (c, vr(f + 8 + 4 * fbk, 4), vr(f + 4 * mbk, 4), "0" if (st == 0 and s == 0) else c))

    def epi(fbk, mbk, t):
        c = acc(mbk, fbk)
        l = []
        for j in range(8):
            l.append(lambda j=j: a("v_mul_f32 v%d, s61, v%d" % (t + j, c + j)))
        for j in range(8):
            l.append(lambda j=j: a("v_exp_f32 v%d, v%d" % (t + j, t + j)))
        for j in range(8):
            l.append(lambda j=j: a("v_mul_f32 v%d, v%d, v%d" % (c + j, c + j, c + 8 + j)))
        for j in range(8):
            l.append(lambda j=j: a("v_add_f32 v%d, 1.0, v%d" % (t + j, t + j)))
        for j in range(8):
            l.append(lambda j=j: a("v_rcp_f32 v%d, v%d" % (t + j, t + j)))
        l.append(lambda: a("s_nop 0"))
        for j in range(8):
            l.append(lambda j=j: a("v_mul_f32 v%d, v%d, v%d" % (t + j, t + j, c + j)))
        for j in range(4):
            l.append(lambda j=j: a("v_cvt_pk_bf16_f32 v%d, v%d, v%d" % (t + 8 + j, t + 2 * j, t + 2 * j + 1)))
        l.append(lambda: a("buffer_store_dwordx4 %s, v%d, s[%d:%d], s%d offen%s" % (vr(t + 8, 4), 3 + mbk, sH, sH + 3, 53 + fbk, HST)))
        return l

    order = [(0, 0), (0, 1), (1, 0), (1, 1), (2, 0), (2, 1)]
    stamp(a, 1)
    a("s_barrier")
    stamp(a, 2)
    stamp(a, 10, True)
    for r in reads(0, 0, 0):
        r()
    fs = 0
    for st in range(NST - 1):
        if st == 4:
            a("s_cmp_lg_u32 s50, 0")
            a("s_cbranch_scc1 C_nn2")
            a("buffer_load_dwordx2 v[246:247], v248, s[%d:%d], 0 offen sc1" % (sDBG, sDBG + 3))
            a.label("C_nn2")
        for s in range(4):
            if s < 3:
                rd = reads(st, s + 1, fs ^ 1)
                sched = {0: rd[0:3], 1: rd[3:6], 2: rd[6:8]}
                for i, (fbk, mbk) in enumerate(order):
                    mfma(st, s, fs, fbk, mbk)
                    for r in sched.get(i, []):
                        r()
            else:
                rd = reads(st + 1, 0, fs ^ 1)
                for i, (fbk, mbk) in enumerate(order):
                    mfma(st, s, fs, fbk, mbk)
                    if i == 1:
                        a.wait(lg_all=True)
                        a("s_barrier")
                        for r in rd[0:3]:
                            r()
                    if i == 2:
                        for r in rd[3:6]:
                            r()
                    if i == 3:
                        for r in rd[6:8]:
                            r()
                    if st == NST - 2 and i >= 4:
                        sets = [fs ^ 1, fs, 2, 3]
                        ss = i - 3
                        if ss == 2:
                            rd_x(NST - 1, 2, sets[2], 0)(); rd_w(NST - 1, 2, sets[2], 0, 0)(); rd_w(NST - 1, 2, sets[2], 0, 1)()
                            rd_x(NST - 1, 3, sets[3], 0)(); rd_w(NST - 1, 3, sets[3], 0, 0)(); rd_w(NST - 1, 3, sets[3], 0, 1)()
            fs ^= 1
    st = NST - 1
    sets = [fs, fs ^ 1, 2, 3]
    pend = [rd_x(st, 1, sets[1], 0), rd_w(st, 1, sets[1], 0, 0), rd_w(st, 1, sets[1], 0, 1)]
    pend += [rd_x(st, s, sets[s], 1) for s in (1, 2, 3)]
    for f_ in (1, 2):
        for s in (1, 2, 3):
            pend += [rd_w(st, s, sets[s], f_, 0), rd_w(st, s, sets[s], f_, 1)]
    evq = []
    TMP = [8, 20]
    a("s_waitcnt vmcnt(0)")
    nm = 0
    for ti, (fbk, mbk) in enumerate(order):
        for s in ([0, 2, 3, 1] if ti == 0 else range(4)):
            mfma(st, s, sets[s], fbk, mbk)
            nm += 1
            lastline = len(a.lines)
            for _ in range(3):
                if pend:
                    pend.pop(0)()
            if nm == 9:
                assert not pend
                a.wait(lg_all=True)
                a("s_barrier")
            budget = 5
            while evq and budget > 0 and len(a.lines) >= evq[0][0]:
                evq.pop(0)[1]()
                budget -= 1
        evq += [(lastline + 13, th) for th in epi(fbk, mbk, TMP[ti % 2])]
    stamp(a, 3)
    stamp(a, 11, True)
    while evq:
        if len(a.lines) < evq[0][0]:
            a("s_nop %d" % min(15, evq[0][0] - len(a.lines)))
            evq = [(0, th) for _, th in evq]
        evq.pop(0)[1]()
    stamp(a, 4)
    a("s_barrier")
    a("s_waitcnt vmcnt(0)")
    stamp(a, 8)
    a("s_barrier")
    stamp(a, 9)
    a("s_cmp_lg_u32 s50, 0")
    a("s_cbranch_scc1 C_p2b")
    getnonce(a, "a")
    a("s_lshl_b32 s58, s48, 8")
    a("s_lshl_b32 s59, s49, 3")
    a("s_add_u32 s58, s58, s59")
    a("s_add_u32 s58, s58, %d" % FLAG_OFF)
    a("v_mov_b32 v3, s58")
    a("s_mov_b64 exec, 1")
    a("buffer_store_dwordx2 v[246:247], v3, s[%d:%d], 0 offen sc1" % (sH, sH + 3))
    a("s_mov_b64 exec, -1")
    a("s_branch C_p2b")
    a.label("C_p2")
    a("s_waitcnt vmcnt(0) lgkmcnt(0)")
    srd(a, sH, 16, H_BYTES)
    a("s_barrier")
    a("s_cmp_lg_u32 s50, 0")
    a("s_cbranch_scc1 C_p2b")
    a("v_mov_b32 v246, 0")
    a("v_mov_b32 v247, 0")
    getnonce(a, "b")
    a.label("C_p2b")
    p2_setup(a)
    a("s_barrier")
    a("s_cmp_lg_u32 s50, 0")
    a("s_cbranch_scc1 P2_main")
    poll(a)
    a("s_branch P2_main")

    a.label("L_loader")
    a.vm = []
    a.lg = []
    vXo, vWgo, vWuo, vWd = 8, 12, 15, 18
    a("s_sub_u32 s56, s50, 4")
    a("v_lshrrev_b32 v3, 3, v1")
    a("v_and_b32 v4, 7, v1")
    a("v_lshrrev_b32 v5, 4, v1")
    a("s_lshl_b32 s58, s48, 7")
    a("s_lshl_b32 s59, s56, 5")
    a("s_add_u32 s58, s58, s59")
    a("v_add_u32 v6, s58, v3")
    a("v_lshlrev_b32 v6, 10, v6")
    for jj in range(4):
        a("v_add_u32 v7, %d, v5" % (4 * jj))
        a("v_and_b32 v7, 7, v7")
        a("v_xor_b32 v7, v7, v4")
        a("v_lshl_add_u32 v%d, v7, 4, v6" % (vXo + jj))
        if jj:
            a("v_add_u32 v%d, %d, v%d" % (vXo + jj, jj * (8192 - 1024), vXo + jj))
    a("s_mul_i32 s58, s56, 192")
    a("s_mul_i32 s59, s49, 192")
    a("s_mov_b32 s60, 43691")
    a("s_mov_b32 s61, 2752")
    for jj in range(3):
        a("v_add_u32 v6, s58, v1")
        if jj:
            a("v_add_u32 v6, %d, v6" % (64 * jj))
        a("v_mul_lo_u32 v7, v6, s60")
        a("v_lshrrev_b32 v7, 19, v7")
        a("v_mul_u32_u24 v19, 12, v7")
        a("v_sub_u32 v19, v6, v19")
        a("v_mul_lo_u32 v7, v7, s61")
        a("v_add_u32 v7, s59, v7")
        if jj:
            a("v_subrev_u32 v7, %d, v7" % (1024 * jj))
        a("v_lshl_add_u32 v%d, v19, 4, v7" % (vWgo + jj))
        a("v_xor_b32 v19, 2, v19")
        a("v_lshl_add_u32 v%d, v19, 4, v7" % (vWuo + jj))
    a("s_lshl_b32 s58, s56, 3")
    a("v_add_u32 v6, s58, v3")
    a("v_lshlrev_b32 v6, 10, v6")
    a("s_lshl_b32 s58, s52, 7")
    a("v_add_u32 v6, s58, v6")
    a("v_bfe_u32 v7, v1, 4, 1")
    a("v_lshlrev_b32 v7, 2, v7")
    a("v_xor_b32 v7, v7, v4")
    a("v_lshl_add_u32 v%d, v7, 4, v6" % vWd)
    a("s_lshl_b32 s57, s56, 12")
    a("s_mul_i32 s58, s56, 3072")
    a("s_add_u32 s58, s58, 16384")
    a("s_add_u32 s59, s58, 12288")
    a("s_mov_b32 s60, 0")
    a("s_mov_b32 s61, 0")
    a("s_lshl_b32 s18, s56, 10")
    a("s_waitcnt lgkmcnt(0)")
    srd(a, sX, 4, X_BYTES)
    srd(a, sWG, 6, W_BYTES)
    srd(a, sWU, 8, W_BYTES)
    srd(a, sWD, 10, W_BYTES)
    srd(a, sH, 16, H_BYTES)

    def dma(st):
        b = (st % 4) * STG
        a("s_add_u32 m0, s57, %d" % b)
        a("s_nop 0")
        for jj in range(4):
            a.vmem("buffer_load_dwordx4 v%d, s[%d:%d], s60 offen offset:%d lds" % (vXo + jj, sX, sX + 3, 1024 * jj), ("d", st))
        a("s_add_u32 m0, s58, %d" % b)
        a("s_nop 0")
        for jj in range(3):
            a.vmem("buffer_load_dwordx4 v%d, s[%d:%d], s61 offen offset:%d lds" % (vWgo + jj, sWG, sWG + 3, 1024 * jj), ("d", st))
        a("s_add_u32 m0, s59, %d" % b)
        a("s_nop 0")
        for jj in range(3):
            a.vmem("buffer_load_dwordx4 v%d, s[%d:%d], s61 offen offset:%d lds" % (vWuo + jj, sWU, sWU + 3, 1024 * jj), ("d", st))
        a("s_add_u32 s60, s60, 128")
        a("s_add_u32 s61, s61, %d" % (64 * 2752))

    def wd1(reg, t, slot):
        a("s_add_u32 m0, s18, %d" % (reg * STG + slot * 4096))
        a("s_mov_b32 s19, %d" % ((352 * reg + 32 * t) * 1024))
        a.vmem("buffer_load_dwordx4 v%d, s[%d:%d], s19 offen lds" % (vWd, sWD, sWD + 3), ("p", reg, t))

    def l2warm():
        a("s_lshr_b32 s19, s2, 3")
        a("s_lshl_b32 s19, s19, 2")
        a("s_add_u32 s19, s19, s56")
        a("v_lshlrev_b32 v20, 4, v1")
        a("s_mul_i32 s3, s19, 3")
        a("s_add_u32 s3, s3, 1056")
        a("s_lshl_b32 s3, s3, 10")
        for i in range(3):
            a.vmem("buffer_load_dwordx4 v[%d:%d], v20, s[%d:%d], s3 offen offset:%d" % (28 + 4 * i, 31 + 4 * i, sWD, sWD + 3, 1024 * i), "j")
        a("s_lshr_b32 s3, s19, 5")
        a("s_mul_i32 s3, s3, 352")
        a("s_and_b32 s19, s19, 31")
        a("s_add_u32 s3, s3, s19")
        a("s_lshl_b32 s3, s3, 10")
        a.vmem("buffer_load_dwordx4 v[40:43], v20, s[%d:%d], s3 offen" % (sWD, sWD + 3), "j")

    def wdreg(reg):
        if reg < 3:
            wd1(reg, 10, 0)
            for t in range(1, 10):
                wd1(reg, t, t)
        else:
            for t in list(range(1, 10)) + [0]:
                wd1(reg, t, t)

    a("s_cmp_ge_u32 s49, 15")
    a("s_cbranch_scc1 LD_nop1")
    stamp(a, 1)
    dma(0)
    dma(1)
    a.wait(vm=[("d", 0)])
    a("s_barrier")
    stamp(a, 2)
    dma(2)
    dma(3)
    for st in range(NST - 1):
        a.wait(vm=[("d", st + 1)])
        a("s_barrier")
        if st + 4 < NST:
            dma(st + 4)
            if st + 4 == NST - 1 and "nol2w" not in OPTS:
                l2warm()
        else:
            wdreg(st - 4)
    a("s_barrier")
    stamp(a, 3)
    a("s_barrier")
    wdreg(3)
    a.wait(vm=[("p", 2, 10)])
    a("s_branch LD_e")
    a.label("LD_nop1")
    a.vm = []
    for reg in range(4):
        wdreg(reg)
    a.wait(vm=[("p", 2, 10)])
    a.label("LD_e")
    a("s_barrier")
    stamp(a, 4)
    a.vm = ["old"] * 9 + [("p", 3, t) for t in list(range(1, 10)) + [0]]
    p2_setup(a)
    a("s_barrier")
    for reg in range(3):
        a("s_add_u32 m0, s18, %d" % (reg * STG))
        a("s_mov_b32 s19, %d" % (352 * reg * 1024))
        a.vmem("buffer_load_dwordx4 v%d, s[%d:%d], s19 offen lds" % (vWd, sWD, sWD + 3), "p0")
    a.wait(vm=[("p", 3, 0)])
    stamp(a, 8)
    p2_main(a, a.vm)
    a.label("L_end")
    a("s_endpgm")
    return a.text()


HEADER = """; Kernarg layout for this problem (56 bytes, ptrs only, base s[0:1]):
; @launch grid=(256,1,1) block=(512,1,1) lds=163840
.amdgcn_target "amdgcn-amd-amdhsa--gfx950"
.text
.globl standalone__swiglu_ffn__prompt_kernel
.p2align 8
.type standalone__swiglu_ffn__prompt_kernel,@function
"""

KD = """.section .rodata,"a"
.p2align 6
.amdhsa_kernel standalone__swiglu_ffn__prompt_kernel
  .amdhsa_next_free_vgpr 256
  .amdhsa_next_free_sgpr 102
  .amdhsa_accum_offset 256
  .amdhsa_group_segment_fixed_size 0
  .amdhsa_kernarg_size 56
  .amdhsa_user_sgpr_count 2
  .amdhsa_user_sgpr_kernarg_segment_ptr 1
  .amdhsa_system_sgpr_workgroup_id_x 1
.end_amdhsa_kernel
"""


def main():
    out = HEADER + gen() + KD
    path = sys.argv[1] if len(sys.argv) > 1 else "standalone__swiglu_ffn__prompt.s"
    open(path, "w").write(out)


main()
```

```python
import sys

M, D, F = 2048, 512, 1376
KB16 = F // 16
H_BYTES = 0x1000000
FLAG_OFF = 0x800000
X_BYTES = M * D * 2
W_BYTES = D * F * 2
OUT_BYTES = M * D * 2

OPTS = set(sys.argv[2:])
TS = "ts" in OPTS
HLD = " sc1"
HST = " sc1"


class Asm:
    def __init__(self):
        self.lines = []
        self.vm = []
        self.lg = []

    def __call__(self, s):
        self.lines.append("    " + s)

    def label(self, l):
        self.lines.append(l + ":")

    def vmem(self, s, tag):
        self(s)
        self.vm.append(tag)
        assert len(self.vm) <= 63, "too many vmem outstanding"

    def lds(self, s, tag):
        self(s)
        self.lg.append(tag)

    def _need(self, q, tags):
        idx = -1
        for i, t in enumerate(q):
            if t in tags:
                idx = i
        if idx < 0:
            return None
        return len(q) - 1 - idx

    def wait(self, vm=(), lg=(), vm_all=False, lg_all=False):
        parts = []
        if vm_all:
            parts.append("vmcnt(0)")
            self.vm = []
        else:
            n = self._need(self.vm, set(vm))
            if n is not None:
                parts.append("vmcnt(%d)" % n)
                self.vm = self.vm[len(self.vm) - n:] if n else []
        if lg_all:
            if self.lg:
                parts.append("lgkmcnt(0)")
                self.lg = []
        else:
            n = self._need(self.lg, set(lg))
            if n is not None:
                n = min(n, 15)
                parts.append("lgkmcnt(%d)" % n)
                self.lg = self.lg[len(self.lg) - n:] if n else []
        if parts:
            self("s_waitcnt " + " ".join(parts))

    def text(self):
        return "\n".join(self.lines) + "\n"


def vr(a, n):
    return "v[%d:%d]" % (a, a + n - 1)


def srd(a, dst, src, sz):
    a("s_mov_b32 s%d, s%d" % (dst, src))
    a("s_and_b32 s%d, s%d, 0xffff" % (dst + 1, src + 1))
    a("s_mov_b32 s%d, %d" % (dst + 2, sz))
    a("s_mov_b32 s%d, 0x00020000" % (dst + 3))


def stamp(a, i, cyc=False):
    if not TS:
        return
    a("%s s[%d:%d]" % ("s_memtime" if cyc else "s_memrealtime", 64 + 2 * i, 65 + 2 * i))
    a("s_waitcnt lgkmcnt(0)")
    a.lg = []


def stamp_store(a, kidx, wave, endlabel):
    a("s_memrealtime s[78:79]")
    a("s_memtime s[94:95]")
    a("s_waitcnt lgkmcnt(0)")
    a("s_cmp_lg_u32 s50, %d" % wave)
    a("s_cbranch_scc1 %s" % endlabel)
    a("s_mov_b64 exec, -1")
    if "dbgts" in OPTS:
        if kidx == 1:
            a("s_branch %s" % endlabel)
            return
        srd(a, sDBG, 14, 256)
        a("s_mov_b32 s100, 8")
        a("s_cmp_eq_u32 s2, 0")
        a("s_cbranch_scc1 TS_d")
        a("s_mov_b32 s100, 36")
        a("s_cmp_eq_u32 s2, 200")
        a("s_cbranch_scc0 %s" % endlabel)
        a.label("TS_d")
        a("v_mov_b32 v2, 0")
        for n, i in enumerate([0, 2, 3, 4, 9, 5, 7]):
            a("v_mov_b32 v4, s%d" % (64 + 2 * i))
            a("buffer_store_dword v4, v2, s[%d:%d], s100 offen offset:%d" % (sDBG, sDBG + 3, 4 * n))
            a("s_nop 2")
        return
    a("s_mov_b32 s96, s16")
    a("s_and_b32 s97, s17, 0xffff")
    a("s_mov_b32 s98, 0x2000000")
    a("s_mov_b32 s99, 0x00020000")
    a("s_lshl_b32 s100, s2, 7")
    a("s_add_u32 s100, s100, %d" % ((16 << 20) + kidx * 256 * 128))
    a("v_mov_b32 v2, 0")
    for i in range(16):
        a("v_mov_b32 v4, s%d" % (64 + 2 * i))
        a("v_mov_b32 v5, s%d" % (65 + 2 * i))
        a("buffer_store_dwordx2 v[4:5], v2, s[96:99], s100 offen offset:%d" % (8 * i))
        a("s_nop 2")


STG = 40960
NST = 8
sX, sWG, sWU, sWD, sOUT, sH, sDBG = 20, 24, 28, 32, 36, 40, 44

NIT = 11
PDH = 6 if "pdh6" in OPTS else 4
ACC2 = 224
W10 = 208
WF = [176, 192]
HR = 88
vH, vA = 24, 26


def p2_setup(a):
    srd(a, sOUT, 12, OUT_BYTES)
    a("s_and_b32 s56, s50, 3")
    a("s_lshr_b32 s57, s50, 2")
    a("s_lshl_b32 s58, s51, 1")
    a("s_add_u32 s59, s58, s57")
    a("s_mul_i32 s59, s59, 86")
    a("s_mul_i32 s61, s56, 22")
    a("s_add_u32 s59, s59, s61")
    a("s_lshl_b32 s59, s59, 10")
    a("v_lshlrev_b32 v3, 4, v1")
    a("v_add_u32 v%d, s59, v3" % vH)
    a("s_mul_i32 s62, s56, %d" % STG)
    a("s_cmp_eq_u32 s56, 3")
    a("s_cselect_b32 s63, 0, %d" % (10 * 2048))
    a("s_and_b32 s58, s56, 1")
    a("s_lshr_b32 s59, s56, 1")
    a("v_lshrrev_b32 v3, 5, v1")
    a("v_bfe_u32 v4, v1, 2, 2")
    a("v_lshl_add_u32 v3, v3, 2, v4")
    a("v_lshlrev_b32 v3, 7, v3")
    a("v_bfe_u32 v4, v1, 3, 1")
    a("v_xor_b32 v4, s58, v4")
    a("v_lshl_add_u32 v3, v4, 6, v3")
    a("v_bfe_u32 v4, v1, 4, 1")
    a("v_xor_b32 v4, s59, v4")
    a("v_lshl_add_u32 v3, v4, 5, v3")
    a("v_and_b32 v4, 3, v1")
    a("v_lshl_add_u32 v3, v4, 3, v3")
    a("v_add_u32 v%d, s62, v3" % vA)
    a("v_xor_b32 v%d, 64, v%d" % (vA + 1, vA))
    for ks in range(2):
        for da in range(2):
            for half in range(2):
                a("ds_read_b64_tr_b16 %s, v%d offset:%d" % (vr(W10 + (ks * 2 + da) * 4 + 2 * half, 2), vA + da, ks * 2048 + half * 1024))
    a("s_waitcnt lgkmcnt(0)")
    a.lg = []
    P2S[0] += 1
    a("s_cmp_lg_u32 s56, 3")
    a("s_cbranch_scc1 P2S_%d" % P2S[0])
    for j in range(16):
        a("v_mov_b32 v%d, 0" % (W10 + j))
    a.label("P2S_%d" % P2S[0])


P2S = [0]


def p2_main(a, pre_vm):
    a.label("P2_main")
    a.vm = list(pre_vm)
    a.lg = []
    a("s_barrier")
    stamp(a, 5)
    sTL, sTR = 53, 54
    VT = [28, 30]
    if "norot2" in OPTS:
        a("s_mov_b32 s%d, 1" % sTL)
    else:
        a("s_add_u32 s%d, s52, 1" % sTL)
    a("s_mov_b32 s%d, s%d" % (sTR, sTL))

    def adv(r):
        a("s_add_u32 s%d, s%d, 1" % (r, r))
        a("s_cmp_eq_u32 s%d, 10" % r)
        a("s_cselect_b32 s%d, 1, s%d" % (r, r))

    def hloads(i):
        if i == 0:
            so = "s63"
        elif i == NIT - 1:
            so = "0"
        else:
            a("s_lshl_b32 s58, s%d, 11" % sTL)
            so = "s58"
        for ks in range(2):
            a.vmem("buffer_load_dwordx4 %s, v%d, s[%d:%d], %s offen offset:%d%s" % (
                vr(HR + i * 8 + ks * 4, 4), vH, sH, sH + 3, so, 1024 * ks, HLD), ("h", i))
        if 0 < i < NIT - 2:
            adv(sTL)

    def trreads(i, f):
        if i == NIT - 1:
            va = vA
        else:
            va = VT[i % 2]
            a("s_lshl_b32 s59, s%d, 12" % sTR)
            a("v_add_u32 v%d, s59, v%d" % (va, vA))
            a("v_add_u32 v%d, s59, v%d" % (va + 1, vA + 1))
            if i < NIT - 2:
                adv(sTR)
        l = []
        for ks in range(2):
            for da in range(2):
                for half in range(2):
                    l.append((lambda ks=ks, da=da, half=half: a.lds("ds_read_b64_tr_b16 %s, v%d offset:%d" % (
                        vr(f + (ks * 2 + da) * 4 + 2 * half, 2), va + da, ks * 2048 + half * 1024), ("t", i, ks, da))))
        return l

    for i in range(PDH):
        hloads(i)
    for i in range(NIT):
        f = W10 if i == 0 else WF[i % 2]
        rd = []
        if i + 1 < NIT:
            rd = trreads(i + 1, WF[(i + 1) % 2])
        a.wait(vm=[("h", i)])
        n = 0
        for ks in range(2):
            for da in range(2):
                a.wait(lg=[("t", i, ks, da)])
                c = vr(ACC2 + da * 16, 16)
                a("v_mfma_f32_32x32x16_bf16 %s, %s, %s, %s" % (c, vr(f + (ks * 2 + da) * 4, 4), vr(HR + i * 8 + ks * 4, 4),
                                                               "0" if (i == 0 and ks == 0) else c))
                if rd:
                    rd[2 * n]()
                    rd[2 * n + 1]()
                n += 1
            if ks == 0 and i + PDH < NIT:
                hloads(i + PDH)
        if i == NIT - 4:
            a.wait(vm=["p0"])
            a("s_barrier")
        if i == NIT - 2:
            a.wait(lg_all=True)
            a("s_barrier")
    stamp(a, 6)
    a("v_lshlrev_b32 v3, 4, v1")
    a("s_lshl_b32 s58, s57, 13")
    a("v_add_u32 v3, s58, v3")
    a("v_add_u32 v4, s62, v3")
    for x in range(1, 4):
        a("s_xor_b32 s58, s56, %d" % x)
        a("s_mul_i32 s58, s58, %d" % STG)
        a("v_add_u32 v%d, s58, v3" % (4 + x))
    a("s_nop 7")
    for p in range(1, 4):
        c = ACC2 + (p & 1) * 16 + (p >> 1) * 8
        for j in range(2):
            a.lds("ds_write_b128 v4, %s offset:%d" % (vr(c + 4 * j, 4), (p - 1) * 2048 + j * 1024), "r")
    a.wait(lg_all=True)
    a("s_barrier")
    for x in range(1, 4):
        for j in range(2):
            a.lds("ds_read_b128 %s, v%d offset:%d" % (vr(64 + (x - 1) * 8 + 4 * j, 4), 4 + x, (x - 1) * 2048 + j * 1024), ("q", x))
    a("s_lshl_b32 s58, s51, 6")
    a("s_lshl_b32 s59, s57, 5")
    a("s_add_u32 s58, s58, s59")
    a("v_and_b32 v3, 31, v1")
    a("v_add_u32 v3, s58, v3")
    a("v_lshlrev_b32 v3, 10, v3")
    a("s_lshl_b32 s58, s52, 7")
    a("s_and_b32 s59, s56, 1")
    a("s_lshl_b32 s59, s59, 6")
    a("s_add_u32 s58, s58, s59")
    a("s_lshr_b32 s59, s56, 1")
    a("s_lshl_b32 s59, s59, 5")
    a("s_add_u32 s58, s58, s59")
    a("v_add_u32 v3, s58, v3")
    a("v_lshrrev_b32 v8, 5, v1")
    a("v_lshl_add_u32 v3, v8, 4, v3")
    for x in range(1, 4):
        a.wait(lg=[("q", x)])
        for j in range(8):
            a("v_add_f32 v%d, v%d, v%d" % (ACC2 + j, ACC2 + j, 64 + (x - 1) * 8 + j))
    for j in range(4):
        a("v_cvt_pk_bf16_f32 v%d, v%d, v%d" % (32 + j, ACC2 + 2 * j, ACC2 + 2 * j + 1))
    a("s_nop 1")
    a("v_permlane32_swap_b32 v32, v34")
    a("v_permlane32_swap_b32 v33, v35")
    a("buffer_store_dwordx4 v[32:35], v3, s[%d:%d], 0 offen" % (sOUT, sOUT + 3))
    if TS:
        a("s_waitcnt vmcnt(0)")
        a("s_cmp_eq_u32 s50, 4")
        a("s_cbranch_scc1 TS_l")
        stamp_store(a, 0, 0, "L_end")
        a("s_endpgm")
        a.label("TS_l")
        stamp_store(a, 1, 4, "L_end")


def getnonce(a, tag):
    a("s_mov_b32 s59, 0")
    a.label("C_gn" + tag)
    a("v_readfirstlane_b32 s60, v246")
    a("s_nop 3")
    a("s_cmp_lg_u32 s60, 0")
    a("s_cbranch_scc1 C_gnd" + tag)
    a("s_add_u32 s59, s59, 1")
    a("s_cmp_ge_u32 s59, 0x400000")
    a("s_cbranch_scc1 C_gnd" + tag)
    a("s_sleep 8")
    a("buffer_load_dwordx2 v[246:247], v248, s[%d:%d], 0 offen sc1" % (sDBG, sDBG + 3))
    a("s_waitcnt vmcnt(0)")
    a("s_branch C_gn" + tag)
    a.label("C_gnd" + tag)


def poll(a):
    a("s_lshr_b32 s58, s51, 1")
    a("s_lshl_b32 s58, s58, 8")
    a("s_add_u32 s58, s58, %d" % FLAG_OFF)
    a("v_lshlrev_b32 v3, 3, v1")
    a("v_add_u32 v3, s58, v3")
    a("s_mov_b32 s59, 0")
    a("s_mov_b64 exec, 0x7fff")
    NP = 2
    for k in range(NP - 1):
        a("buffer_load_dwordx2 v[%d:%d], v3, s[%d:%d], 0 offen sc1" % (32 + 2 * k, 33 + 2 * k, sH, sH + 3))
        a("s_sleep 6")
    a.label("C_poll")
    for k in range(NP):
        kk = (k + NP - 1) % NP
        a("buffer_load_dwordx2 v[%d:%d], v3, s[%d:%d], 0 offen sc1" % (32 + 2 * kk, 33 + 2 * kk, sH, sH + 3))
        a("s_waitcnt vmcnt(%d)" % (NP - 1))
        a("v_cmp_eq_u64 vcc, v[%d:%d], v[246:247]" % (32 + 2 * k, 33 + 2 * k))
        a("s_add_u32 s59, s59, 1")
        a("s_nop 3")
        a("s_cmp_eq_u64 vcc, exec")
        a("s_cbranch_scc1 C_polled")
        a("s_sleep 6")
    a("s_cmp_ge_u32 s59, 0x400000")
    a("s_cbranch_scc0 C_poll")
    a.label("C_polled")
    a("s_waitcnt vmcnt(0)")
    a("s_mov_b64 exec, -1")


def gen():
    a = Asm()
    a.label("standalone__swiglu_ffn__prompt_kernel")
    a("s_cmp_ge_u32 s2, 256")
    a("s_cbranch_scc1 L_end")
    stamp(a, 0)
    if TS:
        a("s_memtime s[92:93]")
    a("s_load_dwordx8 s[4:11], s[0:1], 0")
    a("s_load_dwordx4 s[12:15], s[0:1], 32")
    a("s_load_dwordx2 s[16:17], s[0:1], 48")
    a("v_lshrrev_b32 v2, 6, v0")
    a("v_and_b32 v1, 63, v0")
    a("s_and_b32 s53, s2, 7")
    a("v_readfirstlane_b32 s50, v2")
    a("s_lshr_b32 s54, s2, 3")
    a("s_and_b32 s48, s53, 1")
    a("s_lshl_b32 s48, s48, 3")
    a("s_and_b32 s55, s54, 7")
    a("s_add_u32 s48, s48, s55")
    a("s_lshr_b32 s49, s53, 1")
    a("s_lshl_b32 s49, s49, 2")
    a("s_lshr_b32 s55, s54, 3")
    a("s_add_u32 s49, s49, s55")
    a("s_lshl_b32 s51, s53, 2")
    a("s_and_b32 s55, s54, 3")
    a("s_add_u32 s51, s51, s55")
    a("s_lshr_b32 s52, s54, 2")
    a("s_cmp_ge_u32 s50, 4")
    a("s_cbranch_scc1 L_loader")

    ACC = 128
    def acc(mbk, fbk):
        return ACC + (mbk * 3 + fbk) * 16
    FR = [32, 52, 100, 224]
    vXa = [72, 88]
    vWa = [76, 92]
    if "nowarm" not in OPTS:
        a("s_waitcnt lgkmcnt(0)")
        srd(a, sX, 4, X_BYTES)
        srd(a, sWG, 6, W_BYTES)
        srd(a, sWU, 8, W_BYTES)
        srd(a, sWD, 10, W_BYTES)
        if "v4" in OPTS:
            a("s_lshr_b32 s56, s2, 3")
            a("s_lshl_b32 s56, s56, 2")
            a("s_add_u32 s56, s56, s50")
            a("s_and_b32 s57, s2, 1")
            a("s_lshl_b32 s57, s57, 7")
            a("s_add_u32 s57, s57, s56")
            a("s_lshl_b32 s57, s57, 13")
            a("s_bfe_u32 s58, s2, 0x20001")
            a("s_mul_i32 s58, s58, 768")
            a("s_mul_i32 s59, s56, %d" % (4 * 2752))
            a("s_add_u32 s58, s58, s59")
            a("v_lshlrev_b32 v3, 4, v1")
            a("s_mov_b32 exec_hi, 0xffff")
            for r in range(4):
                if r:
                    a("s_add_u32 s58, s58, 2752")
                a("buffer_load_dwordx4 v[8:11], v3, s[%d:%d], s58 offen" % (sWG, sWG + 3))
                a("buffer_load_dwordx4 v[12:15], v3, s[%d:%d], s58 offen" % (sWU, sWU + 3))
            a("s_mov_b64 exec, -1")
            for r in range(8):
                if r == 4:
                    a("s_add_u32 s57, s57, 4096")
                a("buffer_load_dwordx4 v[%d:%d], v3, s[%d:%d], s57 offen offset:%d" % (16 + 4 * (r & 1), 19 + 4 * (r & 1), sX, sX + 3, 1024 * (r & 3)))
        else:
            a("s_lshl_b32 s56, s2, 2")
            a("s_add_u32 s56, s56, s50")
            a("s_lshl_b32 s57, s56, 11")
            a("s_mul_i32 s58, s56, 1376")
            a("v_lshlrev_b32 v3, 4, v1")
            a("s_mov_b32 s59, 352")
            a("v_cmp_gt_u32 s[60:61], s59, v3")
            a("buffer_load_dwordx4 v[8:11], v3, s[%d:%d], s57 offen" % (sX, sX + 3))
            a("buffer_load_dwordx4 v[12:15], v3, s[%d:%d], s57 offen offset:1024" % (sX, sX + 3))
            wl = (sWG, sWU)
            for k, r in enumerate(wl):
                a("buffer_load_dwordx4 v[16:19], v3, s[%d:%d], s58 offen" % (r, r + 3))
            a("s_and_saveexec_b64 s[62:63], s[60:61]")
            for k, r in enumerate(wl):
                a("buffer_load_dwordx4 v[20:23], v3, s[%d:%d], s58 offen offset:1024" % (r, r + 3))
            a("s_mov_b64 exec, s[62:63]")
        if "wfirst" in OPTS:
            a("s_waitcnt vmcnt(0)")
            a("s_barrier")
    a("s_waitcnt lgkmcnt(0)")
    srd(a, sDBG, 14, 256)
    a("s_or_b32 s56, s2, s50")
    a("s_cmp_lg_u32 s56, 0")
    a("s_cbranch_scc1 C_nononce")
    a("s_memrealtime s[56:57]")
    a("s_waitcnt lgkmcnt(0)")
    a("s_or_b32 s56, s56, 1")
    a("v_mov_b32 v4, s56")
    a("v_mov_b32 v5, s57")
    a("v_mov_b32 v6, 0")
    a("s_mov_b64 exec, 1")
    a("buffer_store_dwordx2 v[4:5], v6, s[%d:%d], 0 offen sc1" % (sDBG, sDBG + 3))
    a("s_mov_b64 exec, -1")
    a.label("C_nononce")
    a("v_mov_b32 v248, 0")
    a("s_cmp_ge_u32 s49, 15")
    a("s_cbranch_scc1 C_p2")
    a("s_and_b32 s56, s50, 1")
    a("s_lshr_b32 s57, s50, 1")
    a("v_and_b32 v3, 31, v1")
    a("s_lshl_b32 s58, s56, 6")
    a("v_add_u32 v3, s58, v3")
    a("v_lshlrev_b32 v3, 7, v3")
    a("v_lshrrev_b32 v4, 5, v1")
    a("v_bfe_u32 v5, v1, 1, 3")
    a("v_xor_b32 v4, v4, v5")
    for s in range(4):
        a("v_xor_b32 v6, %d, v4" % (2 * s))
        a("v_lshl_add_u32 v%d, v6, 4, v3" % (vXa[0] + s))
        a("v_add_u32 v%d, %d, v%d" % (vXa[1] + s, 2 * STG, vXa[0] + s))
    a("v_bfe_u32 v3, v1, 4, 1")
    a("v_lshrrev_b32 v4, 5, v1")
    a("v_bfe_u32 v5, v1, 2, 2")
    a("v_lshl_add_u32 v4, v4, 3, v5")
    a("v_mul_u32_u24 v4, 192, v4")
    a("v_and_b32 v5, 3, v1")
    a("v_lshl_add_u32 v4, v5, 3, v4")
    a("v_mul_u32_u24 v5, 12288, v3")
    a("v_add_u32 v4, v4, v5")
    a("v_add_u32 v4, 16384, v4")
    a("s_mul_i32 s58, s57, 3")
    for fbk in range(3):
        a("s_add_u32 s59, s58, %d" % fbk)
        a("v_xor_b32 v5, s59, v3")
        a("v_lshl_add_u32 v%d, v5, 5, v4" % (vWa[0] + fbk))
        a("v_add_u32 v%d, %d, v%d" % (vWa[1] + fbk, 2 * STG, vWa[0] + fbk))
    a("s_waitcnt lgkmcnt(0)")
    srd(a, sH, 16, H_BYTES)
    srd(a, sDBG, 14, 256)
    a("s_lshl_b32 s58, s48, 2")
    a("s_lshl_b32 s59, s56, 1")
    a("s_add_u32 s58, s58, s59")
    a("s_mul_i32 s58, s58, 86")
    a("s_mul_i32 s59, s49, 6")
    a("s_mul_i32 s60, s57, 3")
    a("s_add_u32 s59, s59, s60")
    a("s_add_u32 s58, s58, s59")
    a("s_lshl_b32 s58, s58, 10")
    a("v_lshlrev_b32 v3, 4, v1")
    a("v_add_u32 v3, s58, v3")
    a("v_add_u32 v4, %d, v3" % (86 * 1024))
    for fbk in range(3):
        a("s_add_u32 s60, s59, %d" % fbk)
        a("s_cmp_ge_u32 s60, 86")
        a("s_cselect_b32 s%d, 0x40000000, %d" % (53 + fbk, 1024 * fbk))
    a("s_mov_b32 s61, 0xbfb8aa3b")

    def rd_x(st, s, fs, mbk):
        b = st % 4
        return lambda: a.lds("ds_read_b128 %s, v%d offset:%d" % (vr(FR[fs] + 4 * mbk, 4), vXa[b // 2] + s, (b % 2) * STG + 4096 * mbk), ("f", st, s, "x", mbk))

    def rd_w(st, s, fs, fbk, half):
        b = st % 4
        return lambda: a.lds("ds_read_b64_tr_b16 %s, v%d offset:%d" % (vr(FR[fs] + 8 + 4 * fbk + 2 * half, 2), vWa[b // 2] + fbk, (b % 2) * STG + 3072 * s + 768 * half), ("f", st, s, "w", fbk))

    def reads(st, s, fs):
        x = lambda m: rd_x(st, s, fs, m)
        w = lambda f, h: rd_w(st, s, fs, f, h)
        return [x(0), w(0, 0), w(0, 1), x(1), w(1, 0), w(1, 1), w(2, 0), w(2, 1)]

    def mfma(st, s, fs, fbk, mbk):
        f = FR[fs]
        tag = ("f", st, s)
        a.wait(lg=[tag + ("x", mbk), tag + ("w", fbk)])
        c = vr(acc(mbk, fbk), 16)
        if "fake16" in OPTS and st < NST - 1:
            for q in range(2):
                c = vr(acc(mbk, fbk) + 4 * q + 8 * (s & 1), 4)
                a("v_mfma_f32_16x16x32_bf16 %s, %s, %s, %s" % (c, vr(f + 8 + 4 * fbk, 4), vr(f + 4 * mbk, 4), "0" if (st == 0 and s < 2) else c))
                if q == 0 and mid:
                    mid.pop(0)()
            return
        a("v_mfma_f32_32x32x16_bf16 %s, %s, %s, %s" % (c, vr(f + 8 + 4 * fbk, 4), vr(f + 4 * mbk, 4), "0" if (st == 0 and s == 0) else c))

    mid = []

    def epi(fbk, mbk, t):
        c = acc(mbk, fbk)
        l = []
        for j in range(8):
            l.append(lambda j=j: a("v_mul_f32 v%d, s61, v%d" % (t + j, c + j)))
        for j in range(8):
            l.append(lambda j=j: a("v_exp_f32 v%d, v%d" % (t + j, t + j)))
        for j in range(8):
            l.append(lambda j=j: a("v_mul_f32 v%d, v%d, v%d" % (c + j, c + j, c + 8 + j)))
        for j in range(8):
            l.append(lambda j=j: a("v_add_f32 v%d, 1.0, v%d" % (t + j, t + j)))
        for j in range(8):
            l.append(lambda j=j: a("v_rcp_f32 v%d, v%d" % (t + j, t + j)))
        l.append(lambda: a("s_nop 0"))
        for j in range(8):
            l.append(lambda j=j: a("v_mul_f32 v%d, v%d, v%d" % (t + j, t + j, c + j)))
        for j in range(4):
            l.append(lambda j=j: a("v_cvt_pk_bf16_f32 v%d, v%d, v%d" % (t + 8 + j, t + 2 * j, t + 2 * j + 1)))
        l.append(lambda: a("buffer_store_dwordx4 %s, v%d, s[%d:%d], s%d offen%s" % (vr(t + 8, 4), 3 + mbk, sH, sH + 3, 53 + fbk, HST)))
        return l

    def epi_pk(fbk, mbk, t):
        c = acc(mbk, fbk)
        l = []
        for j in range(0, 8, 2):
            l.append(lambda j=j: a("v_pk_mul_f32 %s, %s, v[244:245]" % (vr(t + j, 2), vr(c + j, 2))))
        for j in range(8):
            l.append(lambda j=j: a("v_exp_f32 v%d, v%d" % (t + j, t + j)))
        for j in range(0, 8, 2):
            l.append(lambda j=j: a("v_pk_mul_f32 %s, %s, %s" % (vr(c + j, 2), vr(c + j, 2), vr(c + 8 + j, 2))))
        for j in range(0, 8, 2):
            l.append(lambda j=j: a("v_pk_add_f32 %s, %s, 1.0 op_sel_hi:[1,0]" % (vr(t + j, 2), vr(t + j, 2))))
        for j in range(8):
            l.append(lambda j=j: a("v_rcp_f32 v%d, v%d" % (t + j, t + j)))
        l.append(lambda: a("s_nop 0"))
        for j in range(0, 8, 2):
            l.append(lambda j=j: a("v_pk_mul_f32 %s, %s, %s" % (vr(t + j, 2), vr(t + j, 2), vr(c + j, 2))))
        for j in range(4):
            l.append(lambda j=j: a("v_cvt_pk_bf16_f32 v%d, v%d, v%d" % (t + 8 + j, t + 2 * j, t + 2 * j + 1)))
        l.append(lambda: a("buffer_store_dwordx4 %s, v%d, s[%d:%d], s%d offen%s" % (vr(t + 8, 4), 3 + mbk, sH, sH + 3, 53 + fbk, HST)))
        return l

    a("v_mov_b32 v244, s61")
    a("v_mov_b32 v245, s61")
    order = [(0, 0), (0, 1), (1, 0), (1, 1), (2, 0), (2, 1)]
    stamp(a, 1)
    a("s_barrier")
    stamp(a, 2)
    stamp(a, 10, True)
    for r in reads(0, 0, 0):
        r()
    fs = 0
    for st in range(NST - 1):
        if st == 4:
            a("s_cmp_lg_u32 s50, 0")
            a("s_cbranch_scc1 C_nn2")
            a("buffer_load_dwordx2 v[246:247], v248, s[%d:%d], 0 offen sc1" % (sDBG, sDBG + 3))
            a.label("C_nn2")
        for s in range(4):
            if s < 3:
                rd = reads(st, s + 1, fs ^ 1)
                sched = {0: rd[0:3], 1: rd[3:6], 2: rd[6:8]}
                if "fake16" in OPTS:
                    sched = {i: [rd[2 * i + 1]] for i in range(4)}
                    mid[:] = [rd[2 * i] for i in range(4)]
                for i, (fbk, mbk) in enumerate(order):
                    mfma(st, s, fs, fbk, mbk)
                    for r in sched.get(i, []):
                        r()
            else:
                rd = reads(st + 1, 0, fs ^ 1)
                for i, (fbk, mbk) in enumerate(order):
                    mfma(st, s, fs, fbk, mbk)
                    if i == 1:
                        a.wait(lg_all=True)
                        if "bw" in OPTS:
                            a("s_memtime s[88:89]")
                            a("s_waitcnt lgkmcnt(0)")
                        a("s_barrier")
                        if "bw" in OPTS:
                            a("s_memtime s[90:91]")
                            a("s_waitcnt lgkmcnt(0)")
                            a("s_sub_u32 s88, s90, s88")
                            if st == 0:
                                a("s_mov_b32 s101, 0")
                                a("s_mov_b32 s3, 0")
                            if st < 4:
                                a("s_add_u32 s101, s101, s88")
                            else:
                                a("s_add_u32 s3, s3, s88")
                        for r in rd[0:3]:
                            r()
                    if i == 2:
                        for r in rd[3:6]:
                            r()
                    if i == 3:
                        for r in rd[6:8]:
                            r()
                    if st == NST - 2 and i >= 4:
                        sets = [fs ^ 1, fs, 2, 3]
                        ss = i - 3
                        if ss == 2:
                            rd_x(NST - 1, 2, sets[2], 0)(); rd_w(NST - 1, 2, sets[2], 0, 0)(); rd_w(NST - 1, 2, sets[2], 0, 1)()
                            rd_x(NST - 1, 3, sets[3], 0)(); rd_w(NST - 1, 3, sets[3], 0, 0)(); rd_w(NST - 1, 3, sets[3], 0, 1)()
            fs ^= 1
    st = NST - 1
    sets = [fs, fs ^ 1, 2, 3]
    pend = [rd_x(st, 1, sets[1], 0), rd_w(st, 1, sets[1], 0, 0), rd_w(st, 1, sets[1], 0, 1)]
    pend += [rd_x(st, s, sets[s], 1) for s in (1, 2, 3)]
    for f_ in (1, 2):
        for s in (1, 2, 3):
            pend += [rd_w(st, s, sets[s], f_, 0), rd_w(st, s, sets[s], f_, 1)]
    TMP = [8, 20]
    a("s_waitcnt vmcnt(0)")

    def tile_mfmas(ti):
        fbk, mbk = order[ti]
        return [(lambda s=s: mfma(st, s, sets[s], fbk, mbk)) for s in ([0, 2, 3, 1] if ti == 0 else range(4))]

    for ti in (0, 1):
        for m in tile_mfmas(ti):
            m()
            for _ in range(3):
                if pend:
                    pend.pop(0)()
    assert not pend
    a.wait(lg_all=True)
    a("s_barrier")
    for ti in range(6):
        fbk, mbk = order[ti]
        if ti + 2 < 6:
            ev = epi(fbk, mbk, TMP[ti % 2])
            ms = tile_mfmas(ti + 2)
            step = len(ev) // 4
            for k, th in enumerate(ev):
                if k % step == 0 and ms:
                    ms.pop(0)()
                th()
            assert not ms
            if ti + 2 == 5:
                stamp(a, 3)
                stamp(a, 11, True)
        else:
            for th in epi_pk(fbk, mbk, TMP[ti % 2]):
                th()
    stamp(a, 4)
    a("s_barrier")
    a("s_waitcnt vmcnt(0)")
    stamp(a, 8)
    a("s_barrier")
    stamp(a, 9)
    a("s_cmp_lg_u32 s50, 0")
    a("s_cbranch_scc1 C_p2b")
    getnonce(a, "a")
    a("s_lshl_b32 s58, s48, 8")
    a("s_lshl_b32 s59, s49, 3")
    a("s_add_u32 s58, s58, s59")
    a("s_add_u32 s58, s58, %d" % FLAG_OFF)
    a("v_mov_b32 v3, s58")
    a("s_mov_b64 exec, 1")
    a("buffer_store_dwordx2 v[246:247], v3, s[%d:%d], 0 offen sc1" % (sH, sH + 3))
    a("s_mov_b64 exec, -1")
    a("s_branch C_p2b")
    a.label("C_p2")
    a("s_waitcnt vmcnt(0) lgkmcnt(0)")
    srd(a, sH, 16, H_BYTES)
    a("s_barrier")
    a("s_cmp_lg_u32 s50, 0")
    a("s_cbranch_scc1 C_p2b")
    a("v_mov_b32 v246, 0")
    a("v_mov_b32 v247, 0")
    getnonce(a, "b")
    a.label("C_p2b")
    p2_setup(a)
    a("s_barrier")
    a("s_cmp_lg_u32 s50, 0")
    a("s_cbranch_scc1 P2_main")
    poll(a)
    a("s_branch P2_main")

    a.label("L_loader")
    a.vm = []
    a.lg = []
    vXo, vWgo, vWuo, vWd = 8, 12, 15, 18
    a("s_sub_u32 s56, s50, 4")
    a("v_lshrrev_b32 v3, 3, v1")
    a("v_and_b32 v4, 7, v1")
    a("v_lshrrev_b32 v5, 4, v1")
    a("s_lshl_b32 s58, s48, 7")
    a("s_lshl_b32 s59, s56, 5")
    a("s_add_u32 s58, s58, s59")
    a("v_add_u32 v6, s58, v3")
    a("v_lshlrev_b32 v6, 10, v6")
    for jj in range(4):
        a("v_add_u32 v7, %d, v5" % (4 * jj))
        a("v_and_b32 v7, 7, v7")
        a("v_xor_b32 v7, v7, v4")
        a("v_lshl_add_u32 v%d, v7, 4, v6" % (vXo + jj))
        if jj:
            a("v_add_u32 v%d, %d, v%d" % (vXo + jj, jj * (8192 - 1024), vXo + jj))
    a("s_mul_i32 s58, s56, 192")
    a("s_mul_i32 s59, s49, 192")
    a("s_mov_b32 s60, 43691")
    a("s_mov_b32 s61, 2752")
    for jj in range(3):
        a("v_add_u32 v6, s58, v1")
        if jj:
            a("v_add_u32 v6, %d, v6" % (64 * jj))
        a("v_mul_lo_u32 v7, v6, s60")
        a("v_lshrrev_b32 v7, 19, v7")
        a("v_mul_u32_u24 v19, 12, v7")
        a("v_sub_u32 v19, v6, v19")
        a("v_mul_lo_u32 v7, v7, s61")
        a("v_add_u32 v7, s59, v7")
        if jj:
            a("v_subrev_u32 v7, %d, v7" % (1024 * jj))
        a("v_lshl_add_u32 v%d, v19, 4, v7" % (vWgo + jj))
        a("v_xor_b32 v19, 2, v19")
        a("v_lshl_add_u32 v%d, v19, 4, v7" % (vWuo + jj))
    a("s_lshl_b32 s58, s56, 3")
    a("v_add_u32 v6, s58, v3")
    a("v_lshlrev_b32 v6, 10, v6")
    a("s_lshl_b32 s58, s52, 7")
    a("v_add_u32 v6, s58, v6")
    a("v_bfe_u32 v7, v1, 4, 1")
    a("v_lshlrev_b32 v7, 2, v7")
    a("v_xor_b32 v7, v7, v4")
    a("v_lshl_add_u32 v%d, v7, 4, v6" % vWd)
    a("s_lshl_b32 s57, s56, 12")
    a("s_mul_i32 s58, s56, 3072")
    a("s_add_u32 s58, s58, 16384")
    a("s_add_u32 s59, s58, 12288")
    if "rot" in OPTS:
        a("s_lshl_b32 s55, s49, 1")
        a("s_add_u32 s55, s55, s48")
        a("s_and_b32 s55, s55, 7")
    else:
        a("s_mov_b32 s55, 0")
    a("s_lshl_b32 s60, s55, 7")
    a("s_mul_i32 s61, s55, %d" % (64 * 2752))
    a("s_lshl_b32 s18, s56, 10")
    a("s_waitcnt lgkmcnt(0)")
    srd(a, sX, 4, X_BYTES)
    srd(a, sWG, 6, W_BYTES)
    srd(a, sWU, 8, W_BYTES)
    srd(a, sWD, 10, W_BYTES)
    srd(a, sH, 16, H_BYTES)

    def dma(st):
        if "nodma" in OPTS and st > 3:
            return
        b = (st % 4) * STG
        a("s_add_u32 m0, s57, %d" % b)
        a("s_nop 0")
        for jj in range(4):
            a.vmem("buffer_load_dwordx4 v%d, s[%d:%d], s60 offen offset:%d lds" % (vXo + jj, sX, sX + 3, 1024 * jj), ("d", st))
        a("s_add_u32 m0, s58, %d" % b)
        a("s_nop 0")
        for jj in range(3):
            a.vmem("buffer_load_dwordx4 v%d, s[%d:%d], s61 offen offset:%d lds" % (vWgo + jj, sWG, sWG + 3, 1024 * jj), ("d", st))
        a("s_add_u32 m0, s59, %d" % b)
        a("s_nop 0")
        for jj in range(3):
            a.vmem("buffer_load_dwordx4 v%d, s[%d:%d], s61 offen offset:%d lds" % (vWuo + jj, sWU, sWU + 3, 1024 * jj), ("d", st))
        a("s_add_u32 s55, s55, 1")
        a("s_and_b32 s55, s55, 7")
        a("s_lshl_b32 s60, s55, 7")
        a("s_mul_i32 s61, s55, %d" % (64 * 2752))

    def wd1(reg, t, slot):
        a("s_add_u32 m0, s18, %d" % (reg * STG + slot * 4096))
        a("s_mov_b32 s19, %d" % ((352 * reg + 32 * t) * 1024))
        a.vmem("buffer_load_dwordx4 v%d, s[%d:%d], s19 offen lds" % (vWd, sWD, sWD + 3), ("p", reg, t))

    def l2warm():
        a("s_lshr_b32 s19, s2, 3")
        a("s_lshl_b32 s19, s19, 2")
        a("s_add_u32 s19, s19, s56")
        a("v_lshlrev_b32 v20, 4, v1")
        a("s_mul_i32 s3, s19, 3")
        a("s_add_u32 s3, s3, 1056")
        a("s_lshl_b32 s3, s3, 10")
        for i in range(3):
            a.vmem("buffer_load_dwordx4 v[%d:%d], v20, s[%d:%d], s3 offen offset:%d" % (28 + 4 * i, 31 + 4 * i, sWD, sWD + 3, 1024 * i), "j")
        a("s_lshr_b32 s3, s19, 5")
        a("s_mul_i32 s3, s3, 352")
        a("s_and_b32 s19, s19, 31")
        a("s_add_u32 s3, s3, s19")
        a("s_lshl_b32 s3, s3, 10")
        a.vmem("buffer_load_dwordx4 v[40:43], v20, s[%d:%d], s3 offen" % (sWD, sWD + 3), "j")

    NPRE = 3
    for o in OPTS:
        if o.startswith("pre"):
            NPRE = int(o[3:])
    SUN = 10
    for o in OPTS:
        if o.startswith("sun"):
            SUN = int(o[3:])

    def wdreg(reg):
        wd1(reg, 10, 0)
        for t in range(1, 10):
            wd1(reg, t, t)

    rest = [(r, 10) for r in range(NPRE, 3)]
    for t in list(range(1, 10)) + [0]:
        for r in range(NPRE, 4):
            if t == 0 and r < 3:
                continue
            rest.append((r, t))

    def issue(lst):
        for r, t in lst:
            wd1(r, t, 0 if t == 10 else t)

    if "wfirst" in OPTS:
        a("s_barrier")
    a("s_cmp_ge_u32 s49, 15")
    a("s_cbranch_scc1 LD_nop1")
    stamp(a, 1)
    dma(0)
    dma(1)
    a.wait(vm=[("d", 0)])
    a("s_barrier")
    stamp(a, 2)
    dma(2)
    dma(3)
    for st in range(NST - 1):
        a.wait(vm=[("d", st + 1)])
        a("s_barrier")
        if st + 4 < NST:
            dma(st + 4)
            if st == 1:
                a("s_lshl_b32 s19, s2, 2")
                a("s_add_u32 s19, s19, s56")
                a("s_mul_i32 s3, s19, 1376")
                a("v_lshlrev_b32 v20, 4, v1")
                a("s_mov_b32 s19, 352")
                a("v_cmp_gt_u32 vcc, s19, v20")
                a.vmem("buffer_load_dwordx4 v[28:31], v20, s[%d:%d], s3 offen" % (sWD, sWD + 3), "j")
                a("s_and_saveexec_b64 s[62:63], vcc")
                a.vmem("buffer_load_dwordx4 v[32:35], v20, s[%d:%d], s3 offen offset:1024" % (sWD, sWD + 3), "j")
                a("s_mov_b64 exec, s[62:63]")
        elif st - 4 < NPRE:
            wdreg(st - 4)
    a("s_barrier")
    stamp(a, 3)
    a("s_barrier")
    issue(rest[:SUN])
    a.wait(vm=[("p", r, 10) for r in range(3)])
    a("s_branch LD_e")
    a.label("LD_nop1")
    a.vm = []
    for reg in range(NPRE):
        wdreg(reg)
    issue(rest[:SUN])
    a.wait(vm=[("p", r, 10) for r in range(3)])
    a.label("LD_e")
    a("s_barrier")
    stamp(a, 4)
    a.vm = ["old"] * 20
    issue(rest[SUN:])
    a.vm.append("last")
    a.lines.append("    ; marker")
    p2_setup(a)
    a("s_barrier")
    for reg in range(3):
        a("s_add_u32 m0, s18, %d" % (reg * STG))
        a("s_mov_b32 s19, %d" % (352 * reg * 1024))
        a.vmem("buffer_load_dwordx4 v%d, s[%d:%d], s19 offen lds" % (vWd, sWD, sWD + 3), "p0")
    a.wait(vm=["last"])
    stamp(a, 8)
    p2_main(a, a.vm)
    a.label("L_end")
    a("s_endpgm")
    return a.text()


HEADER = """; Kernarg layout for this problem (56 bytes, ptrs only, base s[0:1]):
; @launch grid=(256,1,1) block=(512,1,1) lds=163840
.amdgcn_target "amdgcn-amd-amdhsa--gfx950"
.text
.globl standalone__swiglu_ffn__prompt_kernel
.p2align 8
.type standalone__swiglu_ffn__prompt_kernel,@function
"""

KD = """.section .rodata,"a"
.p2align 6
.amdhsa_kernel standalone__swiglu_ffn__prompt_kernel
  .amdhsa_next_free_vgpr 256
  .amdhsa_next_free_sgpr 102
  .amdhsa_accum_offset 256
  .amdhsa_group_segment_fixed_size 0
  .amdhsa_kernarg_size 56
  .amdhsa_user_sgpr_count 2
  .amdhsa_user_sgpr_kernarg_segment_ptr 1
  .amdhsa_system_sgpr_workgroup_id_x 1
.end_amdhsa_kernel
"""


def main():
    out = HEADER + gen() + KD
    path = sys.argv[1] if len(sys.argv) > 1 else "standalone__swiglu_ffn__prompt.s"
    open(path, "w").write(out)


main()
```

```python
import sys

M, D, F = 2048, 512, 1376
KB16 = F // 16
H_BYTES = 0x1000000
FLAG_OFF = 0x800000
X_BYTES = M * D * 2
W_BYTES = D * F * 2
OUT_BYTES = M * D * 2

OPTS = set(sys.argv[2:])
TS = "ts" in OPTS
HLD = " sc1"
HST = " sc1"


class Asm:
    def __init__(self):
        self.lines = []
        self.vm = []
        self.lg = []

    def __call__(self, s):
        self.lines.append("    " + s)

    def label(self, l):
        self.lines.append(l + ":")

    def vmem(self, s, tag):
        self(s)
        self.vm.append(tag)
        assert len(self.vm) <= 63, "too many vmem outstanding"

    def lds(self, s, tag):
        self(s)
        self.lg.append(tag)

    def _need(self, q, tags):
        idx = -1
        for i, t in enumerate(q):
            if t in tags:
                idx = i
        if idx < 0:
            return None
        return len(q) - 1 - idx

    def wait(self, vm=(), lg=(), vm_all=False, lg_all=False):
        parts = []
        if vm_all:
            parts.append("vmcnt(0)")
            self.vm = []
        else:
            n = self._need(self.vm, set(vm))
            if n is not None:
                parts.append("vmcnt(%d)" % n)
                self.vm = self.vm[len(self.vm) - n:] if n else []
        if lg_all:
            if self.lg:
                parts.append("lgkmcnt(0)")
                self.lg = []
        else:
            n = self._need(self.lg, set(lg))
            if n is not None:
                n = min(n, 15)
                parts.append("lgkmcnt(%d)" % n)
                self.lg = self.lg[len(self.lg) - n:] if n else []
        if parts:
            self("s_waitcnt " + " ".join(parts))

    def text(self):
        return "\n".join(self.lines) + "\n"


def vr(a, n):
    return "v[%d:%d]" % (a, a + n - 1)


def srd(a, dst, src, sz):
    a("s_mov_b32 s%d, s%d" % (dst, src))
    a("s_and_b32 s%d, s%d, 0xffff" % (dst + 1, src + 1))
    a("s_mov_b32 s%d, %d" % (dst + 2, sz))
    a("s_mov_b32 s%d, 0x00020000" % (dst + 3))


def stamp(a, i, cyc=False):
    if not TS:
        return
    a("%s s[%d:%d]" % ("s_memtime" if cyc else "s_memrealtime", 64 + 2 * i, 65 + 2 * i))
    a("s_waitcnt lgkmcnt(0)")
    a.lg = []


def stamp_store(a, kidx, wave, endlabel):
    a("s_memrealtime s[78:79]")
    a("s_memtime s[94:95]")
    a("s_waitcnt lgkmcnt(0)")
    a("s_cmp_lg_u32 s50, %d" % wave)
    a("s_cbranch_scc1 %s" % endlabel)
    a("s_mov_b64 exec, -1")
    if "dbgts" in OPTS:
        if kidx == 1:
            a("s_branch %s" % endlabel)
            return
        srd(a, sDBG, 14, 256)
        a("s_mov_b32 s100, 8")
        a("s_cmp_eq_u32 s2, 0")
        a("s_cbranch_scc1 TS_d")
        a("s_mov_b32 s100, 36")
        a("s_cmp_eq_u32 s2, 200")
        a("s_cbranch_scc0 %s" % endlabel)
        a.label("TS_d")
        a("v_mov_b32 v2, 0")
        for n, i in enumerate([0, 2, 3, 4, 9, 5, 7]):
            a("v_mov_b32 v4, s%d" % (64 + 2 * i))
            a("buffer_store_dword v4, v2, s[%d:%d], s100 offen offset:%d" % (sDBG, sDBG + 3, 4 * n))
            a("s_nop 2")
        return
    a("s_mov_b32 s96, s16")
    a("s_and_b32 s97, s17, 0xffff")
    a("s_mov_b32 s98, 0x2000000")
    a("s_mov_b32 s99, 0x00020000")
    a("s_lshl_b32 s100, s2, 7")
    a("s_add_u32 s100, s100, %d" % ((16 << 20) + kidx * 256 * 128))
    a("v_mov_b32 v2, 0")
    for i in range(16):
        a("v_mov_b32 v4, s%d" % (64 + 2 * i))
        a("v_mov_b32 v5, s%d" % (65 + 2 * i))
        a("buffer_store_dwordx2 v[4:5], v2, s[96:99], s100 offen offset:%d" % (8 * i))
        a("s_nop 2")


STG = 40960
NST = 8
sX, sWG, sWU, sWD, sOUT, sH, sDBG = 20, 24, 28, 32, 36, 40, 44

NIT = 11
PDH = 6 if "pdh6" in OPTS else 4
ACC2 = 224
W10 = 208
WF = [176, 192]
HR = 88
vH, vA = 24, 26


def p2_setup(a):
    srd(a, sOUT, 12, OUT_BYTES)
    a("s_and_b32 s56, s50, 3")
    a("s_lshr_b32 s57, s50, 2")
    a("s_lshl_b32 s58, s51, 1")
    a("s_add_u32 s59, s58, s57")
    a("s_mul_i32 s59, s59, 86")
    a("s_mul_i32 s61, s56, 22")
    a("s_add_u32 s59, s59, s61")
    a("s_lshl_b32 s59, s59, 10")
    a("v_lshlrev_b32 v3, 4, v1")
    a("v_add_u32 v%d, s59, v3" % vH)
    a("s_mul_i32 s62, s56, %d" % STG)
    a("s_cmp_eq_u32 s56, 3")
    a("s_cselect_b32 s63, 0, %d" % (10 * 2048))
    a("s_and_b32 s58, s56, 1")
    a("s_lshr_b32 s59, s56, 1")
    a("v_lshrrev_b32 v3, 5, v1")
    a("v_bfe_u32 v4, v1, 2, 2")
    a("v_lshl_add_u32 v3, v3, 2, v4")
    a("v_lshlrev_b32 v3, 7, v3")
    a("v_bfe_u32 v4, v1, 3, 1")
    a("v_xor_b32 v4, s58, v4")
    a("v_lshl_add_u32 v3, v4, 6, v3")
    a("v_bfe_u32 v4, v1, 4, 1")
    a("v_xor_b32 v4, s59, v4")
    a("v_lshl_add_u32 v3, v4, 5, v3")
    a("v_and_b32 v4, 3, v1")
    a("v_lshl_add_u32 v3, v4, 3, v3")
    a("v_add_u32 v%d, s62, v3" % vA)
    a("v_xor_b32 v%d, 64, v%d" % (vA + 1, vA))
    for ks in range(2):
        for da in range(2):
            for half in range(2):
                a("ds_read_b64_tr_b16 %s, v%d offset:%d" % (vr(W10 + (ks * 2 + da) * 4 + 2 * half, 2), vA + da, ks * 2048 + half * 1024))
    a("s_waitcnt lgkmcnt(0)")
    a.lg = []
    P2S[0] += 1
    a("s_cmp_lg_u32 s56, 3")
    a("s_cbranch_scc1 P2S_%d" % P2S[0])
    for j in range(16):
        a("v_mov_b32 v%d, 0" % (W10 + j))
    a.label("P2S_%d" % P2S[0])


P2S = [0]


def p2_main(a, pre_vm):
    a.label("P2_main")
    a.vm = list(pre_vm)
    a.lg = []
    a("s_barrier")
    stamp(a, 5)
    sTL, sTR = 53, 54
    VT = [28, 30]
    if "norot2" in OPTS:
        a("s_mov_b32 s%d, 1" % sTL)
    else:
        a("s_add_u32 s%d, s52, 1" % sTL)
    a("s_mov_b32 s%d, s%d" % (sTR, sTL))

    def adv(r):
        a("s_add_u32 s%d, s%d, 1" % (r, r))
        a("s_cmp_eq_u32 s%d, 10" % r)
        a("s_cselect_b32 s%d, 1, s%d" % (r, r))

    def hloads(i):
        if i == 0:
            so = "s63"
        elif i == NIT - 1:
            so = "0"
        else:
            a("s_lshl_b32 s58, s%d, 11" % sTL)
            so = "s58"
        for ks in range(2):
            a.vmem("buffer_load_dwordx4 %s, v%d, s[%d:%d], %s offen offset:%d%s" % (
                vr(HR + i * 8 + ks * 4, 4), vH, sH, sH + 3, so, 1024 * ks, HLD), ("h", i))
        if 0 < i < NIT - 2:
            adv(sTL)

    def trreads(i, f):
        if i == NIT - 1:
            va = vA
        else:
            va = VT[i % 2]
            a("s_lshl_b32 s59, s%d, 12" % sTR)
            a("v_add_u32 v%d, s59, v%d" % (va, vA))
            a("v_add_u32 v%d, s59, v%d" % (va + 1, vA + 1))
            if i < NIT - 2:
                adv(sTR)
        l = []
        for ks in range(2):
            for da in range(2):
                for half in range(2):
                    l.append((lambda ks=ks, da=da, half=half: a.lds("ds_read_b64_tr_b16 %s, v%d offset:%d" % (
                        vr(f + (ks * 2 + da) * 4 + 2 * half, 2), va + da, ks * 2048 + half * 1024), ("t", i, ks, da))))
        return l

    for i in range(PDH):
        hloads(i)
    for i in range(NIT):
        f = W10 if i == 0 else WF[i % 2]
        rd = []
        if i + 1 < NIT:
            rd = trreads(i + 1, WF[(i + 1) % 2])
        a.wait(vm=[("h", i)])
        n = 0
        for ks in range(2):
            for da in range(2):
                a.wait(lg=[("t", i, ks, da)])
                c = vr(ACC2 + da * 16, 16)
                a("v_mfma_f32_32x32x16_bf16 %s, %s, %s, %s" % (c, vr(f + (ks * 2 + da) * 4, 4), vr(HR + i * 8 + ks * 4, 4),
                                                               "0" if (i == 0 and ks == 0) else c))
                if rd:
                    rd[2 * n]()
                    rd[2 * n + 1]()
                n += 1
            if ks == 0 and i + PDH < NIT:
                hloads(i + PDH)
        if i == NIT - 4:
            a.wait(vm=["p0"])
            a("s_barrier")
        if i == NIT - 2:
            a.wait(lg_all=True)
            a("s_barrier")
    stamp(a, 6)
    a("v_lshlrev_b32 v3, 4, v1")
    a("s_lshl_b32 s58, s57, 13")
    a("v_add_u32 v3, s58, v3")
    a("v_add_u32 v4, s62, v3")
    for x in range(1, 4):
        a("s_xor_b32 s58, s56, %d" % x)
        a("s_mul_i32 s58, s58, %d" % STG)
        a("v_add_u32 v%d, s58, v3" % (4 + x))
    a("s_nop 7")
    for p in range(1, 4):
        c = ACC2 + (p & 1) * 16 + (p >> 1) * 8
        for j in range(2):
            a.lds("ds_write_b128 v4, %s offset:%d" % (vr(c + 4 * j, 4), (p - 1) * 2048 + j * 1024), "r")
    a.wait(lg_all=True)
    a("s_barrier")
    for x in range(1, 4):
        for j in range(2):
            a.lds("ds_read_b128 %s, v%d offset:%d" % (vr(64 + (x - 1) * 8 + 4 * j, 4), 4 + x, (x - 1) * 2048 + j * 1024), ("q", x))
    a("s_lshl_b32 s58, s51, 6")
    a("s_lshl_b32 s59, s57, 5")
    a("s_add_u32 s58, s58, s59")
    a("v_and_b32 v3, 31, v1")
    a("v_add_u32 v3, s58, v3")
    a("v_lshlrev_b32 v3, 10, v3")
    a("s_lshl_b32 s58, s52, 7")
    a("s_and_b32 s59, s56, 1")
    a("s_lshl_b32 s59, s59, 6")
    a("s_add_u32 s58, s58, s59")
    a("s_lshr_b32 s59, s56, 1")
    a("s_lshl_b32 s59, s59, 5")
    a("s_add_u32 s58, s58, s59")
    a("v_add_u32 v3, s58, v3")
    a("v_lshrrev_b32 v8, 5, v1")
    a("v_lshl_add_u32 v3, v8, 4, v3")
    for x in range(1, 4):
        a.wait(lg=[("q", x)])
        for j in range(8):
            a("v_add_f32 v%d, v%d, v%d" % (ACC2 + j, ACC2 + j, 64 + (x - 1) * 8 + j))
    for j in range(4):
        a("v_cvt_pk_bf16_f32 v%d, v%d, v%d" % (32 + j, ACC2 + 2 * j, ACC2 + 2 * j + 1))
    a("s_nop 1")
    a("v_permlane32_swap_b32 v32, v34")
    a("v_permlane32_swap_b32 v33, v35")
    a("buffer_store_dwordx4 v[32:35], v3, s[%d:%d], 0 offen%s" % (sOUT, sOUT + 3, " sc1" if "osc1" in OPTS else (" nt" if "ont" in OPTS else "")))
    if TS:
        a("s_waitcnt vmcnt(0)")
        a("s_cmp_eq_u32 s50, 4")
        a("s_cbranch_scc1 TS_l")
        stamp_store(a, 0, 0, "L_end")
        a("s_endpgm")
        a.label("TS_l")
        stamp_store(a, 1, 4, "L_end")


def getnonce(a, tag):
    a("s_mov_b32 s59, 0")
    a.label("C_gn" + tag)
    a("v_readfirstlane_b32 s60, v246")
    a("s_nop 3")
    a("s_cmp_lg_u32 s60, 0")
    a("s_cbranch_scc1 C_gnd" + tag)
    a("s_add_u32 s59, s59, 1")
    a("s_cmp_ge_u32 s59, 0x400000")
    a("s_cbranch_scc1 C_gnd" + tag)
    a("s_sleep 8")
    a("buffer_load_dwordx2 v[246:247], v248, s[%d:%d], 0 offen sc1" % (sDBG, sDBG + 3))
    a("s_waitcnt vmcnt(0)")
    a("s_branch C_gn" + tag)
    a.label("C_gnd" + tag)


def poll(a):
    a("s_lshr_b32 s58, s51, 1")
    a("s_lshl_b32 s58, s58, 8")
    a("s_add_u32 s58, s58, %d" % FLAG_OFF)
    a("v_lshlrev_b32 v3, 3, v1")
    a("v_add_u32 v3, s58, v3")
    a("s_mov_b32 s59, 0")
    a("s_mov_b64 exec, 0x7fff")
    NP = 2
    for k in range(NP - 1):
        a("buffer_load_dwordx2 v[%d:%d], v3, s[%d:%d], 0 offen sc1" % (32 + 2 * k, 33 + 2 * k, sH, sH + 3))
        a("s_sleep 6")
    a.label("C_poll")
    for k in range(NP):
        kk = (k + NP - 1) % NP
        a("buffer_load_dwordx2 v[%d:%d], v3, s[%d:%d], 0 offen sc1" % (32 + 2 * kk, 33 + 2 * kk, sH, sH + 3))
        a("s_waitcnt vmcnt(%d)" % (NP - 1))
        a("v_cmp_eq_u64 vcc, v[%d:%d], v[246:247]" % (32 + 2 * k, 33 + 2 * k))
        a("s_add_u32 s59, s59, 1")
        a("s_nop 3")
        a("s_cmp_eq_u64 vcc, exec")
        a("s_cbranch_scc1 C_polled")
        a("s_sleep 6")
    a("s_cmp_ge_u32 s59, 0x400000")
    a("s_cbranch_scc0 C_poll")
    a.label("C_polled")
    a("s_waitcnt vmcnt(0)")
    a("s_mov_b64 exec, -1")


def gen():
    a = Asm()
    a.label("standalone__swiglu_ffn__prompt_kernel")
    a("s_cmp_ge_u32 s2, 256")
    a("s_cbranch_scc1 L_end")
    if "badmap" in OPTS:
        a("s_mul_i32 s2, s2, 37")
        a("s_add_u32 s2, s2, 11")
        a("s_and_b32 s2, s2, 255")
        a("s_lshr_b32 s3, s2, 3")
        a("s_xor_b32 s2, s2, s3")
    stamp(a, 0)
    if TS:
        a("s_memtime s[92:93]")
    a("s_load_dwordx8 s[4:11], s[0:1], 0")
    a("s_load_dwordx4 s[12:15], s[0:1], 32")
    a("s_load_dwordx2 s[16:17], s[0:1], 48")
    a("v_lshrrev_b32 v2, 6, v0")
    a("v_and_b32 v1, 63, v0")
    a("s_and_b32 s53, s2, 7")
    a("v_readfirstlane_b32 s50, v2")
    a("s_lshr_b32 s54, s2, 3")
    a("s_and_b32 s48, s53, 1")
    a("s_lshl_b32 s48, s48, 3")
    a("s_and_b32 s55, s54, 7")
    a("s_add_u32 s48, s48, s55")
    a("s_lshr_b32 s49, s53, 1")
    a("s_lshl_b32 s49, s49, 2")
    a("s_lshr_b32 s55, s54, 3")
    a("s_add_u32 s49, s49, s55")
    a("s_lshl_b32 s51, s53, 2")
    a("s_and_b32 s55, s54, 3")
    a("s_add_u32 s51, s51, s55")
    a("s_lshr_b32 s52, s54, 2")
    a("s_cmp_ge_u32 s50, 4")
    a("s_cbranch_scc1 L_loader")

    ACC = 128
    def acc(mbk, fbk):
        return ACC + (mbk * 3 + fbk) * 16
    FR = [32, 52, 100, 224]
    vXa = [72, 88]
    vWa = [76, 92]
    if "nowarm" not in OPTS:
        a("s_waitcnt lgkmcnt(0)")
        srd(a, sX, 4, X_BYTES)
        srd(a, sWG, 6, W_BYTES)
        srd(a, sWU, 8, W_BYTES)
        srd(a, sWD, 10, W_BYTES)
        if "v4" in OPTS:
            a("s_lshr_b32 s56, s2, 3")
            a("s_lshl_b32 s56, s56, 2")
            a("s_add_u32 s56, s56, s50")
            a("s_and_b32 s57, s2, 1")
            a("s_lshl_b32 s57, s57, 7")
            a("s_add_u32 s57, s57, s56")
            a("s_lshl_b32 s57, s57, 13")
            a("s_bfe_u32 s58, s2, 0x20001")
            a("s_mul_i32 s58, s58, 768")
            a("s_mul_i32 s59, s56, %d" % (4 * 2752))
            a("s_add_u32 s58, s58, s59")
            a("v_lshlrev_b32 v3, 4, v1")
            a("s_mov_b32 exec_hi, 0xffff")
            for r in range(4):
                if r:
                    a("s_add_u32 s58, s58, 2752")
                a("buffer_load_dwordx4 v[8:11], v3, s[%d:%d], s58 offen" % (sWG, sWG + 3))
                a("buffer_load_dwordx4 v[12:15], v3, s[%d:%d], s58 offen" % (sWU, sWU + 3))
            a("s_mov_b64 exec, -1")
            for r in range(8):
                if r == 4:
                    a("s_add_u32 s57, s57, 4096")
                a("buffer_load_dwordx4 v[%d:%d], v3, s[%d:%d], s57 offen offset:%d" % (16 + 4 * (r & 1), 19 + 4 * (r & 1), sX, sX + 3, 1024 * (r & 3)))
        else:
            a("s_lshl_b32 s56, s2, 2")
            a("s_add_u32 s56, s56, s50")
            a("s_lshl_b32 s57, s56, 11")
            a("s_mul_i32 s58, s56, 1376")
            a("v_lshlrev_b32 v3, 4, v1")
            a("s_mov_b32 s59, 352")
            a("v_cmp_gt_u32 s[60:61], s59, v3")
            a("buffer_load_dwordx4 v[8:11], v3, s[%d:%d], s57 offen" % (sX, sX + 3))
            a("buffer_load_dwordx4 v[12:15], v3, s[%d:%d], s57 offen offset:1024" % (sX, sX + 3))
            wl = (sWG, sWU)
            for k, r in enumerate(wl):
                a("buffer_load_dwordx4 v[16:19], v3, s[%d:%d], s58 offen" % (r, r + 3))
            a("s_and_saveexec_b64 s[62:63], s[60:61]")
            for k, r in enumerate(wl):
                a("buffer_load_dwordx4 v[20:23], v3, s[%d:%d], s58 offen offset:1024" % (r, r + 3))
            a("s_mov_b64 exec, s[62:63]")
        if "wfirst" in OPTS:
            a("s_waitcnt vmcnt(0)")
            a("s_barrier")
    a("s_waitcnt lgkmcnt(0)")
    srd(a, sDBG, 14, 256)
    a("s_or_b32 s56, s2, s50")
    a("s_cmp_lg_u32 s56, 0")
    a("s_cbranch_scc1 C_nononce")
    a("s_memrealtime s[56:57]")
    a("s_waitcnt lgkmcnt(0)")
    a("s_or_b32 s56, s56, 1")
    a("v_mov_b32 v4, s56")
    a("v_mov_b32 v5, s57")
    a("v_mov_b32 v6, 0")
    a("s_mov_b64 exec, 1")
    a("buffer_store_dwordx2 v[4:5], v6, s[%d:%d], 0 offen sc1" % (sDBG, sDBG + 3))
    a("s_mov_b64 exec, -1")
    a.label("C_nononce")
    a("v_mov_b32 v248, 0")
    a("s_cmp_ge_u32 s49, 15")
    a("s_cbranch_scc1 C_p2")
    if "cdma" in OPTS:
        vb = 104
        a("v_lshrrev_b32 v3, 3, v1")
        a("v_and_b32 v4, 7, v1")
        a("v_lshrrev_b32 v5, 4, v1")
        a("s_lshl_b32 s58, s48, 7")
        a("s_lshl_b32 s59, s50, 5")
        a("s_add_u32 s58, s58, s59")
        a("v_add_u32 v6, s58, v3")
        a("v_lshlrev_b32 v6, 10, v6")
        for jj in range(4):
            a("v_add_u32 v7, %d, v5" % (4 * jj))
            a("v_and_b32 v7, 7, v7")
            a("v_xor_b32 v7, v7, v4")
            a("v_lshl_add_u32 v%d, v7, 4, v6" % (vb + jj))
            if jj:
                a("v_add_u32 v%d, %d, v%d" % (vb + jj, jj * (8192 - 1024), vb + jj))
        a("s_mul_i32 s58, s50, 192")
        a("s_mul_i32 s59, s49, 192")
        a("s_mov_b32 s60, 43691")
        a("s_mov_b32 s61, 2752")
        for jj in range(3):
            a("v_add_u32 v6, s58, v1")
            if jj:
                a("v_add_u32 v6, %d, v6" % (64 * jj))
            a("v_mul_lo_u32 v7, v6, s60")
            a("v_lshrrev_b32 v7, 19, v7")
            a("v_mul_u32_u24 v5, 12, v7")
            a("v_sub_u32 v5, v6, v5")
            a("v_mul_lo_u32 v7, v7, s61")
            a("v_add_u32 v7, s59, v7")
            if jj:
                a("v_subrev_u32 v7, %d, v7" % (1024 * jj))
            a("v_lshl_add_u32 v%d, v5, 4, v7" % (vb + 4 + jj))
            a("v_xor_b32 v5, 2, v5")
            a("v_lshl_add_u32 v%d, v5, 4, v7" % (vb + 7 + jj))
        a("s_lshl_b32 s57, s50, 12")
        a("s_mul_i32 s58, s50, 3072")
        a("s_add_u32 s58, s58, 16384")
        a("s_add_u32 s59, s58, 12288")
        for st in (2, 3):
            b = st * STG
            a("s_mov_b32 s60, %d" % (128 * st))
            a("s_mov_b32 s61, %d" % (64 * 2752 * st))
            a("s_add_u32 m0, s57, %d" % b)
            a("s_nop 0")
            for jj in range(4):
                a("buffer_load_dwordx4 v%d, s[%d:%d], s60 offen offset:%d lds" % (vb + jj, sX, sX + 3, 1024 * jj))
            a("s_add_u32 m0, s58, %d" % b)
            a("s_nop 0")
            for jj in range(3):
                a("buffer_load_dwordx4 v%d, s[%d:%d], s61 offen offset:%d lds" % (vb + 4 + jj, sWG, sWG + 3, 1024 * jj))
            a("s_add_u32 m0, s59, %d" % b)
            a("s_nop 0")
            for jj in range(3):
                a("buffer_load_dwordx4 v%d, s[%d:%d], s61 offen offset:%d lds" % (vb + 7 + jj, sWU, sWU + 3, 1024 * jj))
    a("s_and_b32 s56, s50, 1")
    a("s_lshr_b32 s57, s50, 1")
    a("v_and_b32 v3, 31, v1")
    a("s_lshl_b32 s58, s56, 6")
    a("v_add_u32 v3, s58, v3")
    a("v_lshlrev_b32 v3, 7, v3")
    a("v_lshrrev_b32 v4, 5, v1")
    a("v_bfe_u32 v5, v1, 1, 3")
    a("v_xor_b32 v4, v4, v5")
    for s in range(4):
        a("v_xor_b32 v6, %d, v4" % (2 * s))
        a("v_lshl_add_u32 v%d, v6, 4, v3" % (vXa[0] + s))
        a("v_add_u32 v%d, %d, v%d" % (vXa[1] + s, 2 * STG, vXa[0] + s))
    a("v_bfe_u32 v3, v1, 4, 1")
    a("v_lshrrev_b32 v4, 5, v1")
    a("v_bfe_u32 v5, v1, 2, 2")
    a("v_lshl_add_u32 v4, v4, 3, v5")
    a("v_mul_u32_u24 v4, 192, v4")
    a("v_and_b32 v5, 3, v1")
    a("v_lshl_add_u32 v4, v5, 3, v4")
    a("v_mul_u32_u24 v5, 12288, v3")
    a("v_add_u32 v4, v4, v5")
    a("v_add_u32 v4, 16384, v4")
    a("s_mul_i32 s58, s57, 3")
    for fbk in range(3):
        a("s_add_u32 s59, s58, %d" % fbk)
        a("v_xor_b32 v5, s59, v3")
        a("v_lshl_add_u32 v%d, v5, 5, v4" % (vWa[0] + fbk))
        a("v_add_u32 v%d, %d, v%d" % (vWa[1] + fbk, 2 * STG, vWa[0] + fbk))
    a("s_waitcnt lgkmcnt(0)")
    srd(a, sH, 16, H_BYTES)
    srd(a, sDBG, 14, 256)
    a("s_lshl_b32 s58, s48, 2")
    a("s_lshl_b32 s59, s56, 1")
    a("s_add_u32 s58, s58, s59")
    a("s_mul_i32 s58, s58, 86")
    a("s_mul_i32 s59, s49, 6")
    a("s_mul_i32 s60, s57, 3")
    a("s_add_u32 s59, s59, s60")
    a("s_add_u32 s58, s58, s59")
    a("s_lshl_b32 s58, s58, 10")
    a("v_lshlrev_b32 v3, 4, v1")
    a("v_add_u32 v3, s58, v3")
    a("v_add_u32 v4, %d, v3" % (86 * 1024))
    for fbk in range(3):
        a("s_add_u32 s60, s59, %d" % fbk)
        a("s_cmp_ge_u32 s60, 86")
        a("s_cselect_b32 s%d, 0x40000000, %d" % (53 + fbk, 1024 * fbk))
    a("s_mov_b32 s61, 0xbfb8aa3b")

    def rd_x(st, s, fs, mbk):
        b = st % 4
        return lambda: a.lds("ds_read_b128 %s, v%d offset:%d" % (vr(FR[fs] + 4 * mbk, 4), vXa[b // 2] + s, (b % 2) * STG + 4096 * mbk), ("f", st, s, "x", mbk))

    def rd_w(st, s, fs, fbk, half):
        b = st % 4
        return lambda: a.lds("ds_read_b64_tr_b16 %s, v%d offset:%d" % (vr(FR[fs] + 8 + 4 * fbk + 2 * half, 2), vWa[b // 2] + fbk, (b % 2) * STG + 3072 * s + 768 * half), ("f", st, s, "w", fbk))

    def reads(st, s, fs):
        x = lambda m: rd_x(st, s, fs, m)
        w = lambda f, h: rd_w(st, s, fs, f, h)
        return [x(0), w(0, 0), w(0, 1), x(1), w(1, 0), w(1, 1), w(2, 0), w(2, 1)]

    def mfma(st, s, fs, fbk, mbk):
        f = FR[fs]
        tag = ("f", st, s)
        a.wait(lg=[tag + ("x", mbk), tag + ("w", fbk)])
        c = vr(acc(mbk, fbk), 16)
        if "fake16" in OPTS and st < NST - 1:
            for q in range(2):
                c = vr(acc(mbk, fbk) + 4 * q + 8 * (s & 1), 4)
                a("v_mfma_f32_16x16x32_bf16 %s, %s, %s, %s" % (c, vr(f + 8 + 4 * fbk, 4), vr(f + 4 * mbk, 4), "0" if (st == 0 and s < 2) else c))
                if q == 0 and mid:
                    mid.pop(0)()
            return
        a("v_mfma_f32_32x32x16_bf16 %s, %s, %s, %s" % (c, vr(f + 8 + 4 * fbk, 4), vr(f + 4 * mbk, 4), "0" if (st == 0 and s == 0) else c))

    mid = []

    def epi(fbk, mbk, t):
        c = acc(mbk, fbk)
        l = []
        for j in range(8):
            l.append(lambda j=j: a("v_mul_f32 v%d, s61, v%d" % (t + j, c + j)))
        for j in range(8):
            l.append(lambda j=j: a("v_exp_f32 v%d, v%d" % (t + j, t + j)))
        for j in range(8):
            l.append(lambda j=j: a("v_mul_f32 v%d, v%d, v%d" % (c + j, c + j, c + 8 + j)))
        for j in range(8):
            l.append(lambda j=j: a("v_add_f32 v%d, 1.0, v%d" % (t + j, t + j)))
        for j in range(8):
            l.append(lambda j=j: a("v_rcp_f32 v%d, v%d" % (t + j, t + j)))
        l.append(lambda: a("s_nop 0"))
        for j in range(8):
            l.append(lambda j=j: a("v_mul_f32 v%d, v%d, v%d" % (t + j, t + j, c + j)))
        for j in range(4):
            l.append(lambda j=j: a("v_cvt_pk_bf16_f32 v%d, v%d, v%d" % (t + 8 + j, t + 2 * j, t + 2 * j + 1)))
        l.append(lambda: a("buffer_store_dwordx4 %s, v%d, s[%d:%d], s%d offen%s" % (vr(t + 8, 4), 3 + mbk, sH, sH + 3, 53 + fbk, HST)))
        return l

    def epi_pk(fbk, mbk, t):
        c = acc(mbk, fbk)
        l = []
        for j in range(0, 8, 2):
            l.append(lambda j=j: a("v_pk_mul_f32 %s, %s, v[244:245]" % (vr(t + j, 2), vr(c + j, 2))))
        for j in range(8):
            l.append(lambda j=j: a("v_exp_f32 v%d, v%d" % (t + j, t + j)))
        for j in range(0, 8, 2):
            l.append(lambda j=j: a("v_pk_mul_f32 %s, %s, %s" % (vr(c + j, 2), vr(c + j, 2), vr(c + 8 + j, 2))))
        for j in range(0, 8, 2):
            l.append(lambda j=j: a("v_pk_add_f32 %s, %s, 1.0 op_sel_hi:[1,0]" % (vr(t + j, 2), vr(t + j, 2))))
        for j in range(8):
            l.append(lambda j=j: a("v_rcp_f32 v%d, v%d" % (t + j, t + j)))
        l.append(lambda: a("s_nop 0"))
        for j in range(0, 8, 2):
            l.append(lambda j=j: a("v_pk_mul_f32 %s, %s, %s" % (vr(t + j, 2), vr(t + j, 2), vr(c + j, 2))))
        for j in range(4):
            l.append(lambda j=j: a("v_cvt_pk_bf16_f32 v%d, v%d, v%d" % (t + 8 + j, t + 2 * j, t + 2 * j + 1)))
        l.append(lambda: a("buffer_store_dwordx4 %s, v%d, s[%d:%d], s%d offen%s" % (vr(t + 8, 4), 3 + mbk, sH, sH + 3, 53 + fbk, HST)))
        return l

    a("v_mov_b32 v244, s61")
    a("v_mov_b32 v245, s61")
    order = [(0, 0), (0, 1), (1, 0), (1, 1), (2, 0), (2, 1)]
    stamp(a, 1)
    a("s_barrier")
    stamp(a, 2)
    stamp(a, 10, True)
    for r in reads(0, 0, 0):
        r()
    fs = 0
    for st in range(NST - 1):
        if st == 4:
            a("s_cmp_lg_u32 s50, 0")
            a("s_cbranch_scc1 C_nn2")
            a("buffer_load_dwordx2 v[246:247], v248, s[%d:%d], 0 offen sc1" % (sDBG, sDBG + 3))
            a.label("C_nn2")
        for s in range(4):
            if s < 3:
                rd = reads(st, s + 1, fs ^ 1)
                sched = {0: rd[0:3], 1: rd[3:6], 2: rd[6:8]}
                if "fake16" in OPTS:
                    sched = {i: [rd[2 * i + 1]] for i in range(4)}
                    mid[:] = [rd[2 * i] for i in range(4)]
                for i, (fbk, mbk) in enumerate(order):
                    mfma(st, s, fs, fbk, mbk)
                    for r in sched.get(i, []):
                        r()
            else:
                rd = reads(st + 1, 0, fs ^ 1)
                for i, (fbk, mbk) in enumerate(order):
                    mfma(st, s, fs, fbk, mbk)
                    if i == 1:
                        a.wait(lg_all=True)
                        if "cdma" in OPTS and st in (1, 2):
                            a("s_waitcnt vmcnt(%d)" % (10 if st == 1 else 0))
                        if "bw" in OPTS:
                            a("s_memtime s[88:89]")
                            a("s_waitcnt lgkmcnt(0)")
                        a("s_barrier")
                        if "bw" in OPTS:
                            a("s_memtime s[90:91]")
                            a("s_waitcnt lgkmcnt(0)")
                            a("s_sub_u32 s88, s90, s88")
                            if st == 0:
                                a("s_mov_b32 s101, 0")
                                a("s_mov_b32 s3, 0")
                            if st < 4:
                                a("s_add_u32 s101, s101, s88")
                            else:
                                a("s_add_u32 s3, s3, s88")
                        for r in rd[0:3]:
                            r()
                    if i == 2:
                        for r in rd[3:6]:
                            r()
                    if i == 3:
                        for r in rd[6:8]:
                            r()
                    if st == NST - 2 and i >= 4:
                        sets = [fs ^ 1, fs, 2, 3]
                        ss = i - 3
                        if ss == 2:
                            rd_x(NST - 1, 2, sets[2], 0)(); rd_w(NST - 1, 2, sets[2], 0, 0)(); rd_w(NST - 1, 2, sets[2], 0, 1)()
                            rd_x(NST - 1, 3, sets[3], 0)(); rd_w(NST - 1, 3, sets[3], 0, 0)(); rd_w(NST - 1, 3, sets[3], 0, 1)()
            fs ^= 1
    st = NST - 1
    sets = [fs, fs ^ 1, 2, 3]
    pend = [rd_x(st, 1, sets[1], 0), rd_w(st, 1, sets[1], 0, 0), rd_w(st, 1, sets[1], 0, 1)]
    pend += [rd_x(st, s, sets[s], 1) for s in (1, 2, 3)]
    for f_ in (1, 2):
        for s in (1, 2, 3):
            pend += [rd_w(st, s, sets[s], f_, 0), rd_w(st, s, sets[s], f_, 1)]
    TMP = [8, 20]
    a("s_waitcnt vmcnt(0)")

    def tile_mfmas(ti):
        fbk, mbk = order[ti]
        return [(lambda s=s: mfma(st, s, sets[s], fbk, mbk)) for s in ([0, 2, 3, 1] if ti == 0 else range(4))]

    for ti in (0, 1):
        for m in tile_mfmas(ti):
            m()
            for _ in range(3):
                if pend:
                    pend.pop(0)()
    assert not pend
    a.wait(lg_all=True)
    a("s_barrier")
    for ti in range(6):
        fbk, mbk = order[ti]
        if ti + 2 < 6:
            ev = epi(fbk, mbk, TMP[ti % 2])
            ms = tile_mfmas(ti + 2)
            step = len(ev) // 4
            for k, th in enumerate(ev):
                if k % step == 0 and ms:
                    ms.pop(0)()
                th()
            assert not ms
            if ti + 2 == 5:
                stamp(a, 3)
                stamp(a, 11, True)
        else:
            for th in epi_pk(fbk, mbk, TMP[ti % 2]):
                th()
    stamp(a, 4)
    a("s_barrier")
    a("s_waitcnt vmcnt(0)")
    stamp(a, 8)
    a("s_barrier")
    stamp(a, 9)
    a("s_cmp_lg_u32 s50, 0")
    a("s_cbranch_scc1 C_p2b")
    getnonce(a, "a")
    a("s_lshl_b32 s58, s48, 8")
    a("s_lshl_b32 s59, s49, 3")
    a("s_add_u32 s58, s58, s59")
    a("s_add_u32 s58, s58, %d" % FLAG_OFF)
    a("v_mov_b32 v3, s58")
    a("s_mov_b64 exec, 1")
    a("buffer_store_dwordx2 v[246:247], v3, s[%d:%d], 0 offen sc1" % (sH, sH + 3))
    a("s_mov_b64 exec, -1")
    a("s_branch C_p2b")
    a.label("C_p2")
    a("s_waitcnt vmcnt(0) lgkmcnt(0)")
    srd(a, sH, 16, H_BYTES)
    a("s_barrier")
    a("s_cmp_lg_u32 s50, 0")
    a("s_cbranch_scc1 C_p2b")
    a("v_mov_b32 v246, 0")
    a("v_mov_b32 v247, 0")
    getnonce(a, "b")
    a.label("C_p2b")
    p2_setup(a)
    a("s_barrier")
    a("s_cmp_lg_u32 s50, 0")
    a("s_cbranch_scc1 P2_main")
    poll(a)
    a("s_branch P2_main")

    a.label("L_loader")
    a.vm = []
    a.lg = []
    vXo, vWgo, vWuo, vWd = 8, 12, 15, 18
    a("s_sub_u32 s56, s50, 4")
    a("v_lshrrev_b32 v3, 3, v1")
    a("v_and_b32 v4, 7, v1")
    a("v_lshrrev_b32 v5, 4, v1")
    a("s_lshl_b32 s58, s48, 7")
    a("s_lshl_b32 s59, s56, 5")
    a("s_add_u32 s58, s58, s59")
    a("v_add_u32 v6, s58, v3")
    a("v_lshlrev_b32 v6, 10, v6")
    for jj in range(4):
        a("v_add_u32 v7, %d, v5" % (4 * jj))
        a("v_and_b32 v7, 7, v7")
        a("v_xor_b32 v7, v7, v4")
        a("v_lshl_add_u32 v%d, v7, 4, v6" % (vXo + jj))
        if jj:
            a("v_add_u32 v%d, %d, v%d" % (vXo + jj, jj * (8192 - 1024), vXo + jj))
    a("s_mul_i32 s58, s56, 192")
    a("s_mul_i32 s59, s49, 192")
    a("s_mov_b32 s60, 43691")
    a("s_mov_b32 s61, 2752")
    for jj in range(3):
        a("v_add_u32 v6, s58, v1")
        if jj:
            a("v_add_u32 v6, %d, v6" % (64 * jj))
        a("v_mul_lo_u32 v7, v6, s60")
        a("v_lshrrev_b32 v7, 19, v7")
        a("v_mul_u32_u24 v19, 12, v7")
        a("v_sub_u32 v19, v6, v19")
        a("v_mul_lo_u32 v7, v7, s61")
        a("v_add_u32 v7, s59, v7")
        if jj:
            a("v_subrev_u32 v7, %d, v7" % (1024 * jj))
        a("v_lshl_add_u32 v%d, v19, 4, v7" % (vWgo + jj))
        a("v_xor_b32 v19, 2, v19")
        a("v_lshl_add_u32 v%d, v19, 4, v7" % (vWuo + jj))
    a("s_lshl_b32 s58, s56, 3")
    a("v_add_u32 v6, s58, v3")
    a("v_lshlrev_b32 v6, 10, v6")
    a("s_lshl_b32 s58, s52, 7")
    a("v_add_u32 v6, s58, v6")
    a("v_bfe_u32 v7, v1, 4, 1")
    a("v_lshlrev_b32 v7, 2, v7")
    a("v_xor_b32 v7, v7, v4")
    a("v_lshl_add_u32 v%d, v7, 4, v6" % vWd)
    a("s_lshl_b32 s57, s56, 12")
    a("s_mul_i32 s58, s56, 3072")
    a("s_add_u32 s58, s58, 16384")
    a("s_add_u32 s59, s58, 12288")
    if "rot" in OPTS:
        a("s_lshl_b32 s55, s49, 1")
        a("s_add_u32 s55, s55, s48")
        a("s_and_b32 s55, s55, 7")
    else:
        a("s_mov_b32 s55, 0")
    a("s_lshl_b32 s60, s55, 7")
    a("s_mul_i32 s61, s55, %d" % (64 * 2752))
    a("s_lshl_b32 s18, s56, 10")
    a("s_waitcnt lgkmcnt(0)")
    srd(a, sX, 4, X_BYTES)
    srd(a, sWG, 6, W_BYTES)
    srd(a, sWU, 8, W_BYTES)
    srd(a, sWD, 10, W_BYTES)
    srd(a, sH, 16, H_BYTES)

    def dma(st):
        if "nodma" in OPTS and st > 3:
            return
        b = (st % 4) * STG
        a("s_add_u32 m0, s57, %d" % b)
        a("s_nop 0")
        for jj in range(4):
            a.vmem("buffer_load_dwordx4 v%d, s[%d:%d], s60 offen offset:%d lds" % (vXo + jj, sX, sX + 3, 1024 * jj), ("d", st))
        a("s_add_u32 m0, s58, %d" % b)
        a("s_nop 0")
        for jj in range(3):
            a.vmem("buffer_load_dwordx4 v%d, s[%d:%d], s61 offen offset:%d lds" % (vWgo + jj, sWG, sWG + 3, 1024 * jj), ("d", st))
        a("s_add_u32 m0, s59, %d" % b)
        a("s_nop 0")
        for jj in range(3):
            a.vmem("buffer_load_dwordx4 v%d, s[%d:%d], s61 offen offset:%d lds" % (vWuo + jj, sWU, sWU + 3, 1024 * jj), ("d", st))
        a("s_add_u32 s55, s55, 1")
        a("s_and_b32 s55, s55, 7")
        a("s_lshl_b32 s60, s55, 7")
        a("s_mul_i32 s61, s55, %d" % (64 * 2752))

    def wd1(reg, t, slot):
        a("s_add_u32 m0, s18, %d" % (reg * STG + slot * 4096))
        a("s_mov_b32 s19, %d" % ((352 * reg + 32 * t) * 1024))
        a.vmem("buffer_load_dwordx4 v%d, s[%d:%d], s19 offen lds" % (vWd, sWD, sWD + 3), ("p", reg, t))

    def l2warm():
        a("s_lshr_b32 s19, s2, 3")
        a("s_lshl_b32 s19, s19, 2")
        a("s_add_u32 s19, s19, s56")
        a("v_lshlrev_b32 v20, 4, v1")
        a("s_mul_i32 s3, s19, 3")
        a("s_add_u32 s3, s3, 1056")
        a("s_lshl_b32 s3, s3, 10")
        for i in range(3):
            a.vmem("buffer_load_dwordx4 v[%d:%d], v20, s[%d:%d], s3 offen offset:%d" % (28 + 4 * i, 31 + 4 * i, sWD, sWD + 3, 1024 * i), "j")
        a("s_lshr_b32 s3, s19, 5")
        a("s_mul_i32 s3, s3, 352")
        a("s_and_b32 s19, s19, 31")
        a("s_add_u32 s3, s3, s19")
        a("s_lshl_b32 s3, s3, 10")
        a.vmem("buffer_load_dwordx4 v[40:43], v20, s[%d:%d], s3 offen" % (sWD, sWD + 3), "j")

    NPRE = 3
    for o in OPTS:
        if o.startswith("pre"):
            NPRE = int(o[3:])
    SUN = 10
    for o in OPTS:
        if o.startswith("sun"):
            SUN = int(o[3:])

    def wdreg(reg):
        wd1(reg, 10, 0)
        for t in range(1, 10):
            wd1(reg, t, t)

    rest = [(r, 10) for r in range(NPRE, 3)]
    for t in list(range(1, 10)) + [0]:
        for r in range(NPRE, 4):
            if t == 0 and r < 3:
                continue
            rest.append((r, t))

    def issue(lst):
        for r, t in lst:
            wd1(r, t, 0 if t == 10 else t)

    if "wfirst" in OPTS:
        a("s_barrier")
    a("s_cmp_ge_u32 s49, 15")
    a("s_cbranch_scc1 LD_nop1")
    stamp(a, 1)
    dma(0)
    dma(1)
    a.wait(vm=[("d", 0)])
    a("s_barrier")
    stamp(a, 2)
    if "cdma" in OPTS:
        a("s_add_u32 s55, s55, 2")
        a("s_lshl_b32 s60, s55, 7")
        a("s_mul_i32 s61, s55, %d" % (64 * 2752))
    else:
        dma(2)
        dma(3)
    for st in range(NST - 1):
        a.wait(vm=[("d", st + 1)])
        a("s_barrier")
        if st + 4 < NST:
            dma(st + 4)
            if st == 1:
                a("s_lshl_b32 s19, s2, 2")
                a("s_add_u32 s19, s19, s56")
                a("s_mul_i32 s3, s19, 1376")
                a("v_lshlrev_b32 v20, 4, v1")
                a("s_mov_b32 s19, 352")
                a("v_cmp_gt_u32 vcc, s19, v20")
                a.vmem("buffer_load_dwordx4 v[28:31], v20, s[%d:%d], s3 offen" % (sWD, sWD + 3), "j")
                a("s_and_saveexec_b64 s[62:63], vcc")
                a.vmem("buffer_load_dwordx4 v[32:35], v20, s[%d:%d], s3 offen offset:1024" % (sWD, sWD + 3), "j")
                a("s_mov_b64 exec, s[62:63]")
        elif st - 4 < NPRE:
            wdreg(st - 4)
    a("s_barrier")
    stamp(a, 3)
    a("s_barrier")
    issue(rest[:SUN])
    a.wait(vm=[("p", r, 10) for r in range(3)])
    a("s_branch LD_e")
    a.label("LD_nop1")
    a.vm = []
    for reg in range(NPRE):
        wdreg(reg)
    issue(rest[:SUN])
    a.wait(vm=[("p", r, 10) for r in range(3)])
    a.label("LD_e")
    a("s_barrier")
    stamp(a, 4)
    a.vm = ["old"] * 20
    issue(rest[SUN:])
    a.vm.append("last")
    a.lines.append("    ; marker")
    p2_setup(a)
    a("s_barrier")
    for reg in range(3):
        a("s_add_u32 m0, s18, %d" % (reg * STG))
        a("s_mov_b32 s19, %d" % (352 * reg * 1024))
        a.vmem("buffer_load_dwordx4 v%d, s[%d:%d], s19 offen lds" % (vWd, sWD, sWD + 3), "p0")
    a.wait(vm=["last"])
    stamp(a, 8)
    p2_main(a, a.vm)
    a.label("L_end")
    a("s_endpgm")
    return a.text()


HEADER = """; Kernarg layout for this problem (56 bytes, ptrs only, base s[0:1]):
; @launch grid=(256,1,1) block=(512,1,1) lds=163840
.amdgcn_target "amdgcn-amd-amdhsa--gfx950"
.text
.globl standalone__swiglu_ffn__prompt_kernel
.p2align 8
.type standalone__swiglu_ffn__prompt_kernel,@function
"""

KD = """.section .rodata,"a"
.p2align 6
.amdhsa_kernel standalone__swiglu_ffn__prompt_kernel
  .amdhsa_next_free_vgpr 256
  .amdhsa_next_free_sgpr 102
  .amdhsa_accum_offset 256
  .amdhsa_group_segment_fixed_size 0
  .amdhsa_kernarg_size 56
  .amdhsa_user_sgpr_count 2
  .amdhsa_user_sgpr_kernarg_segment_ptr 1
  .amdhsa_system_sgpr_workgroup_id_x 1
.end_amdhsa_kernel
"""


def main():
    out = HEADER + gen() + KD
    path = sys.argv[1] if len(sys.argv) > 1 else "standalone__swiglu_ffn__prompt.s"
    open(path, "w").write(out)


main()
```

```python
import sys

M, D, F = 2048, 512, 1376
KB16 = F // 16
H_BYTES = 0x1000000
FLAG_OFF = 0x800000
X_BYTES = M * D * 2
W_BYTES = D * F * 2
OUT_BYTES = M * D * 2

OPTS = set(sys.argv[2:])
TS = "ts" in OPTS
HLD = " sc1"
HST = " sc1"


class Asm:
    def __init__(self):
        self.lines = []
        self.vm = []
        self.lg = []

    def __call__(self, s):
        self.lines.append("    " + s)

    def label(self, l):
        self.lines.append(l + ":")

    def vmem(self, s, tag):
        self(s)
        self.vm.append(tag)
        assert len(self.vm) <= 63, "too many vmem outstanding"

    def lds(self, s, tag):
        self(s)
        self.lg.append(tag)

    def _need(self, q, tags):
        idx = -1
        for i, t in enumerate(q):
            if t in tags:
                idx = i
        if idx < 0:
            return None
        return len(q) - 1 - idx

    def wait(self, vm=(), lg=(), vm_all=False, lg_all=False):
        parts = []
        if vm_all:
            parts.append("vmcnt(0)")
            self.vm = []
        else:
            n = self._need(self.vm, set(vm))
            if n is not None:
                parts.append("vmcnt(%d)" % n)
                self.vm = self.vm[len(self.vm) - n:] if n else []
        if lg_all:
            if self.lg:
                parts.append("lgkmcnt(0)")
                self.lg = []
        else:
            n = self._need(self.lg, set(lg))
            if n is not None:
                n = min(n, 15)
                parts.append("lgkmcnt(%d)" % n)
                self.lg = self.lg[len(self.lg) - n:] if n else []
        if parts:
            self("s_waitcnt " + " ".join(parts))

    def text(self):
        return "\n".join(self.lines) + "\n"


def vr(a, n):
    return "v[%d:%d]" % (a, a + n - 1)


def srd(a, dst, src, sz):
    a("s_mov_b32 s%d, s%d" % (dst, src))
    a("s_and_b32 s%d, s%d, 0xffff" % (dst + 1, src + 1))
    a("s_mov_b32 s%d, %d" % (dst + 2, sz))
    a("s_mov_b32 s%d, 0x00020000" % (dst + 3))


def stamp(a, i, cyc=False):
    if not TS:
        return
    a("%s s[%d:%d]" % ("s_memtime" if cyc else "s_memrealtime", 64 + 2 * i, 65 + 2 * i))
    a("s_waitcnt lgkmcnt(0)")
    a.lg = []


def stamp_store(a, kidx, wave, endlabel):
    a("s_memrealtime s[78:79]")
    a("s_memtime s[94:95]")
    a("s_waitcnt lgkmcnt(0)")
    a("s_cmp_lg_u32 s50, %d" % wave)
    a("s_cbranch_scc1 %s" % endlabel)
    a("s_mov_b64 exec, -1")
    if "dbgts" in OPTS:
        if kidx == 1:
            a("s_branch %s" % endlabel)
            return
        srd(a, sDBG, 14, 256)
        a("s_mov_b32 s100, 8")
        a("s_cmp_eq_u32 s2, 0")
        a("s_cbranch_scc1 TS_d")
        a("s_mov_b32 s100, 36")
        a("s_cmp_eq_u32 s2, 200")
        a("s_cbranch_scc0 %s" % endlabel)
        a.label("TS_d")
        a("v_mov_b32 v2, 0")
        for n, i in enumerate([0, 2, 3, 4, 9, 5, 7]):
            a("v_mov_b32 v4, s%d" % (64 + 2 * i))
            a("buffer_store_dword v4, v2, s[%d:%d], s100 offen offset:%d" % (sDBG, sDBG + 3, 4 * n))
            a("s_nop 2")
        return
    a("s_mov_b32 s96, s16")
    a("s_and_b32 s97, s17, 0xffff")
    a("s_mov_b32 s98, 0x2000000")
    a("s_mov_b32 s99, 0x00020000")
    a("s_lshl_b32 s100, s2, 7")
    a("s_add_u32 s100, s100, %d" % ((16 << 20) + kidx * 256 * 128))
    a("v_mov_b32 v2, 0")
    for i in range(16):
        a("v_mov_b32 v4, s%d" % (64 + 2 * i))
        a("v_mov_b32 v5, s%d" % (65 + 2 * i))
        a("buffer_store_dwordx2 v[4:5], v2, s[96:99], s100 offen offset:%d" % (8 * i))
        a("s_nop 2")


STG = 40960
NST = 8
sX, sWG, sWU, sWD, sOUT, sH, sDBG = 20, 24, 28, 32, 36, 40, 44

NIT = 11
PDH = 6 if "pdh6" in OPTS else 4
ACC2 = 224
W10 = 208
WF = [176, 192]
HR = 88
vH, vA = 24, 26


def p2_setup(a):
    srd(a, sOUT, 12, OUT_BYTES)
    a("s_and_b32 s56, s50, 3")
    a("s_lshr_b32 s57, s50, 2")
    a("s_lshl_b32 s58, s51, 1")
    a("s_add_u32 s59, s58, s57")
    a("s_mul_i32 s59, s59, 86")
    a("s_mul_i32 s61, s56, 22")
    a("s_add_u32 s59, s59, s61")
    a("s_lshl_b32 s59, s59, 10")
    a("v_lshlrev_b32 v3, 4, v1")
    a("v_add_u32 v%d, s59, v3" % vH)
    a("s_mul_i32 s62, s56, %d" % STG)
    a("s_cmp_eq_u32 s56, 3")
    a("s_cselect_b32 s63, 0, %d" % (10 * 2048))
    a("s_and_b32 s58, s56, 1")
    a("s_lshr_b32 s59, s56, 1")
    a("v_lshrrev_b32 v3, 5, v1")
    a("v_bfe_u32 v4, v1, 2, 2")
    a("v_lshl_add_u32 v3, v3, 2, v4")
    a("v_lshlrev_b32 v3, 7, v3")
    a("v_bfe_u32 v4, v1, 3, 1")
    a("v_xor_b32 v4, s58, v4")
    a("v_lshl_add_u32 v3, v4, 6, v3")
    a("v_bfe_u32 v4, v1, 4, 1")
    a("v_xor_b32 v4, s59, v4")
    a("v_lshl_add_u32 v3, v4, 5, v3")
    a("v_and_b32 v4, 3, v1")
    a("v_lshl_add_u32 v3, v4, 3, v3")
    a("v_add_u32 v%d, s62, v3" % vA)
    a("v_xor_b32 v%d, 64, v%d" % (vA + 1, vA))
    for ks in range(2):
        for da in range(2):
            for half in range(2):
                a("ds_read_b64_tr_b16 %s, v%d offset:%d" % (vr(W10 + (ks * 2 + da) * 4 + 2 * half, 2), vA + da, ks * 2048 + half * 1024))
    a("s_waitcnt lgkmcnt(0)")
    a.lg = []
    P2S[0] += 1
    a("s_cmp_lg_u32 s56, 3")
    a("s_cbranch_scc1 P2S_%d" % P2S[0])
    for j in range(16):
        a("v_mov_b32 v%d, 0" % (W10 + j))
    a.label("P2S_%d" % P2S[0])


P2S = [0]


def p2_main(a, pre_vm):
    a.label("P2_main")
    a.vm = list(pre_vm)
    a.lg = []
    a("s_barrier")
    stamp(a, 5)
    def hloads(i):
        if i == 0:
            so = "s63"
        elif i == NIT - 1:
            so = "0"
        else:
            a("s_mov_b32 s58, %d" % (i * 2048))
            so = "s58"
        for ks in range(2):
            a.vmem("buffer_load_dwordx4 %s, v%d, s[%d:%d], %s offen offset:%d%s" % (
                vr(HR + i * 8 + ks * 4, 4), vH, sH, sH + 3, so, 1024 * ks, HLD), ("h", i))

    def trreads(i, f):
        t = 0 if i == NIT - 1 else i
        l = []
        for ks in range(2):
            for da in range(2):
                for half in range(2):
                    l.append((lambda ks=ks, da=da, half=half: a.lds("ds_read_b64_tr_b16 %s, v%d offset:%d" % (
                        vr(f + (ks * 2 + da) * 4 + 2 * half, 2), vA + da, t * 4096 + ks * 2048 + half * 1024), ("t", i, ks, da))))
        return l

    for i in range(PDH):
        hloads(i)
    for i in range(NIT):
        f = W10 if i == 0 else WF[i % 2]
        rd = []
        if i + 1 < NIT:
            rd = trreads(i + 1, WF[(i + 1) % 2])
        a.wait(vm=[("h", i)])
        n = 0
        for ks in range(2):
            for da in range(2):
                a.wait(lg=[("t", i, ks, da)])
                c = vr(ACC2 + da * 16, 16)
                a("v_mfma_f32_32x32x16_bf16 %s, %s, %s, %s" % (c, vr(f + (ks * 2 + da) * 4, 4), vr(HR + i * 8 + ks * 4, 4),
                                                               "0" if (i == 0 and ks == 0) else c))
                if rd:
                    rd[2 * n]()
                    rd[2 * n + 1]()
                n += 1
            if ks == 0 and i + PDH < NIT:
                hloads(i + PDH)
        if i == NIT - 4:
            a.wait(vm=["p0"])
            a("s_barrier")
    stamp(a, 6)
    a("v_lshlrev_b32 v3, 4, v1")
    a("s_mul_i32 s58, s57, 6144")
    a("s_add_u32 s58, s58, 4096")
    a("v_add_u32 v3, s58, v3")
    a("v_add_u32 v4, s62, v3")
    for x in range(1, 4):
        a("s_xor_b32 s58, s56, %d" % x)
        a("s_mul_i32 s58, s58, %d" % STG)
        a("v_add_u32 v%d, s58, v3" % (4 + x))
    a("s_nop 7")
    for p in range(1, 4):
        c = ACC2 + (p & 1) * 16 + (p >> 1) * 8
        for j in range(2):
            a.lds("ds_write_b128 v4, %s offset:%d" % (vr(c + 4 * j, 4), (p - 1) * 2048 + j * 1024), "r")
    a.wait(lg_all=True)
    a("s_barrier")
    for x in range(1, 4):
        for j in range(2):
            a.lds("ds_read_b128 %s, v%d offset:%d" % (vr(64 + (x - 1) * 8 + 4 * j, 4), 4 + x, (x - 1) * 2048 + j * 1024), ("q", x))
    a("s_lshl_b32 s58, s51, 6")
    a("s_lshl_b32 s59, s57, 5")
    a("s_add_u32 s58, s58, s59")
    a("v_and_b32 v3, 31, v1")
    a("v_add_u32 v3, s58, v3")
    a("v_lshlrev_b32 v3, 10, v3")
    a("s_lshl_b32 s58, s52, 7")
    a("s_and_b32 s59, s56, 1")
    a("s_lshl_b32 s59, s59, 6")
    a("s_add_u32 s58, s58, s59")
    a("s_lshr_b32 s59, s56, 1")
    a("s_lshl_b32 s59, s59, 5")
    a("s_add_u32 s58, s58, s59")
    a("v_add_u32 v3, s58, v3")
    a("v_lshrrev_b32 v8, 5, v1")
    a("v_lshl_add_u32 v3, v8, 4, v3")
    for x in range(1, 4):
        a.wait(lg=[("q", x)])
        for j in range(8):
            a("v_add_f32 v%d, v%d, v%d" % (ACC2 + j, ACC2 + j, 64 + (x - 1) * 8 + j))
    for j in range(4):
        a("v_cvt_pk_bf16_f32 v%d, v%d, v%d" % (32 + j, ACC2 + 2 * j, ACC2 + 2 * j + 1))
    a("s_nop 1")
    a("v_permlane32_swap_b32 v32, v34")
    a("v_permlane32_swap_b32 v33, v35")
    a("buffer_store_dwordx4 v[32:35], v3, s[%d:%d], 0 offen%s" % (sOUT, sOUT + 3, " sc1" if "osc1" in OPTS else (" nt" if "ont" in OPTS else "")))
    if TS:
        a("s_waitcnt vmcnt(0)")
        a("s_cmp_eq_u32 s50, 4")
        a("s_cbranch_scc1 TS_l")
        stamp_store(a, 0, 0, "L_end")
        a("s_endpgm")
        a.label("TS_l")
        stamp_store(a, 1, 4, "L_end")


def getnonce(a, tag):
    a("s_mov_b32 s59, 0")
    a.label("C_gn" + tag)
    a("v_readfirstlane_b32 s60, v246")
    a("s_nop 3")
    a("s_cmp_lg_u32 s60, 0")
    a("s_cbranch_scc1 C_gnd" + tag)
    a("s_add_u32 s59, s59, 1")
    a("s_cmp_ge_u32 s59, 0x400000")
    a("s_cbranch_scc1 C_gnd" + tag)
    a("s_sleep 8")
    a("buffer_load_dwordx2 v[246:247], v248, s[%d:%d], 0 offen sc1" % (sDBG, sDBG + 3))
    a("s_waitcnt vmcnt(0)")
    a("s_branch C_gn" + tag)
    a.label("C_gnd" + tag)


def poll(a):
    a("s_lshr_b32 s58, s51, 1")
    a("s_lshl_b32 s58, s58, 8")
    a("s_add_u32 s58, s58, %d" % FLAG_OFF)
    a("v_lshlrev_b32 v3, 3, v1")
    a("v_add_u32 v3, s58, v3")
    a("s_mov_b32 s59, 0")
    a("s_mov_b64 exec, 0x7fff")
    NP = 2
    for k in range(NP - 1):
        a("buffer_load_dwordx2 v[%d:%d], v3, s[%d:%d], 0 offen sc1" % (32 + 2 * k, 33 + 2 * k, sH, sH + 3))
        a("s_sleep 3")
    a.label("C_poll")
    for k in range(NP):
        kk = (k + NP - 1) % NP
        a("buffer_load_dwordx2 v[%d:%d], v3, s[%d:%d], 0 offen sc1" % (32 + 2 * kk, 33 + 2 * kk, sH, sH + 3))
        a("s_waitcnt vmcnt(%d)" % (NP - 1))
        a("v_cmp_eq_u64 vcc, v[%d:%d], v[246:247]" % (32 + 2 * k, 33 + 2 * k))
        a("s_add_u32 s59, s59, 1")
        a("s_nop 3")
        a("s_cmp_eq_u64 vcc, exec")
        a("s_cbranch_scc1 C_polled")
        a("s_sleep 3")
    a("s_cmp_ge_u32 s59, 0x400000")
    a("s_cbranch_scc0 C_poll")
    a.label("C_polled")
    a("s_waitcnt vmcnt(0)")
    a("s_mov_b64 exec, -1")


def gen():
    a = Asm()
    a.label("standalone__swiglu_ffn__prompt_kernel")
    a("s_cmp_ge_u32 s2, 256")
    a("s_cbranch_scc1 L_end")
    if "badmap" in OPTS:
        a("s_mul_i32 s2, s2, 37")
        a("s_add_u32 s2, s2, 11")
        a("s_and_b32 s2, s2, 255")
        a("s_lshr_b32 s3, s2, 3")
        a("s_xor_b32 s2, s2, s3")
    stamp(a, 0)
    if TS:
        a("s_memtime s[92:93]")
    a("s_load_dwordx8 s[4:11], s[0:1], 0")
    a("s_load_dwordx4 s[12:15], s[0:1], 32")
    a("s_load_dwordx2 s[16:17], s[0:1], 48")
    a("v_lshrrev_b32 v2, 6, v0")
    a("v_and_b32 v1, 63, v0")
    a("s_and_b32 s53, s2, 7")
    a("v_readfirstlane_b32 s50, v2")
    a("s_lshr_b32 s54, s2, 3")
    a("s_and_b32 s48, s53, 1")
    a("s_lshl_b32 s48, s48, 3")
    a("s_and_b32 s55, s54, 7")
    a("s_add_u32 s48, s48, s55")
    a("s_lshr_b32 s49, s53, 1")
    a("s_lshl_b32 s49, s49, 2")
    a("s_lshr_b32 s55, s54, 3")
    a("s_add_u32 s49, s49, s55")
    a("s_lshl_b32 s51, s53, 2")
    a("s_and_b32 s55, s54, 3")
    a("s_add_u32 s51, s51, s55")
    a("s_lshr_b32 s52, s54, 2")
    a("s_cmp_ge_u32 s50, 4")
    a("s_cbranch_scc1 L_loader")

    ACC = 128
    def acc(mbk, fbk):
        return ACC + (mbk * 3 + fbk) * 16
    FR = [32, 52, 100, 224]
    vXa = [72, 88]
    vWa = [76, 92]
    if "nowarm" not in OPTS:
        a("s_waitcnt lgkmcnt(0)")
        srd(a, sX, 4, X_BYTES)
        srd(a, sWG, 6, W_BYTES)
        srd(a, sWU, 8, W_BYTES)
        srd(a, sWD, 10, W_BYTES)
        if "v4" in OPTS:
            a("s_lshr_b32 s56, s2, 3")
            a("s_lshl_b32 s56, s56, 2")
            a("s_add_u32 s56, s56, s50")
            a("s_and_b32 s57, s2, 1")
            a("s_lshl_b32 s57, s57, 7")
            a("s_add_u32 s57, s57, s56")
            a("s_lshl_b32 s57, s57, 13")
            a("s_bfe_u32 s58, s2, 0x20001")
            a("s_mul_i32 s58, s58, 768")
            a("s_mul_i32 s59, s56, %d" % (4 * 2752))
            a("s_add_u32 s58, s58, s59")
            a("v_lshlrev_b32 v3, 4, v1")
            a("s_mov_b32 exec_hi, 0xffff")
            for r in range(4):
                if r:
                    a("s_add_u32 s58, s58, 2752")
                a("buffer_load_dwordx4 v[8:11], v3, s[%d:%d], s58 offen" % (sWG, sWG + 3))
                a("buffer_load_dwordx4 v[12:15], v3, s[%d:%d], s58 offen" % (sWU, sWU + 3))
            a("s_mov_b64 exec, -1")
            for r in range(8):
                if r == 4:
                    a("s_add_u32 s57, s57, 4096")
                a("buffer_load_dwordx4 v[%d:%d], v3, s[%d:%d], s57 offen offset:%d" % (16 + 4 * (r & 1), 19 + 4 * (r & 1), sX, sX + 3, 1024 * (r & 3)))
        else:
            a("s_lshl_b32 s56, s2, 2")
            a("s_add_u32 s56, s56, s50")
            a("s_lshl_b32 s57, s56, 11")
            a("s_mul_i32 s58, s56, 1376")
            a("v_lshlrev_b32 v3, 4, v1")
            a("s_mov_b32 s59, 352")
            a("v_cmp_gt_u32 s[60:61], s59, v3")
            a("buffer_load_dwordx4 v[8:11], v3, s[%d:%d], s57 offen" % (sX, sX + 3))
            a("buffer_load_dwordx4 v[12:15], v3, s[%d:%d], s57 offen offset:1024" % (sX, sX + 3))
            wl = (sWG, sWU)
            for k, r in enumerate(wl):
                a("buffer_load_dwordx4 v[16:19], v3, s[%d:%d], s58 offen" % (r, r + 3))
            a("s_and_saveexec_b64 s[62:63], s[60:61]")
            for k, r in enumerate(wl):
                a("buffer_load_dwordx4 v[20:23], v3, s[%d:%d], s58 offen offset:1024" % (r, r + 3))
            a("s_mov_b64 exec, s[62:63]")
        if "wfirst" in OPTS:
            a("s_waitcnt vmcnt(0)")
            a("s_barrier")
    a("s_waitcnt lgkmcnt(0)")
    srd(a, sDBG, 14, 256)
    a("s_or_b32 s56, s2, s50")
    a("s_cmp_lg_u32 s56, 0")
    a("s_cbranch_scc1 C_nononce")
    a("s_memrealtime s[56:57]")
    a("s_waitcnt lgkmcnt(0)")
    a("s_or_b32 s56, s56, 1")
    a("v_mov_b32 v4, s56")
    a("v_mov_b32 v5, s57")
    a("v_mov_b32 v6, 0")
    a("s_mov_b64 exec, 1")
    a("buffer_store_dwordx2 v[4:5], v6, s[%d:%d], 0 offen sc1" % (sDBG, sDBG + 3))
    a("s_mov_b64 exec, -1")
    a.label("C_nononce")
    a("v_mov_b32 v248, 0")
    a("s_cmp_ge_u32 s49, 15")
    a("s_cbranch_scc1 C_p2")
    if "cdma" in OPTS:
        vb = 104
        a("v_lshrrev_b32 v3, 3, v1")
        a("v_and_b32 v4, 7, v1")
        a("v_lshrrev_b32 v5, 4, v1")
        a("s_lshl_b32 s58, s48, 7")
        a("s_lshl_b32 s59, s50, 5")
        a("s_add_u32 s58, s58, s59")
        a("v_add_u32 v6, s58, v3")
        a("v_lshlrev_b32 v6, 10, v6")
        for jj in range(4):
            a("v_add_u32 v7, %d, v5" % (4 * jj))
            a("v_and_b32 v7, 7, v7")
            a("v_xor_b32 v7, v7, v4")
            a("v_lshl_add_u32 v%d, v7, 4, v6" % (vb + jj))
            if jj:
                a("v_add_u32 v%d, %d, v%d" % (vb + jj, jj * (8192 - 1024), vb + jj))
        a("s_mul_i32 s58, s50, 192")
        a("s_mul_i32 s59, s49, 192")
        a("s_mov_b32 s60, 43691")
        a("s_mov_b32 s61, 2752")
        for jj in range(3):
            a("v_add_u32 v6, s58, v1")
            if jj:
                a("v_add_u32 v6, %d, v6" % (64 * jj))
            a("v_mul_lo_u32 v7, v6, s60")
            a("v_lshrrev_b32 v7, 19, v7")
            a("v_mul_u32_u24 v5, 12, v7")
            a("v_sub_u32 v5, v6, v5")
            a("v_mul_lo_u32 v7, v7, s61")
            a("v_add_u32 v7, s59, v7")
            if jj:
                a("v_subrev_u32 v7, %d, v7" % (1024 * jj))
            a("v_lshl_add_u32 v%d, v5, 4, v7" % (vb + 4 + jj))
            a("v_xor_b32 v5, 2, v5")
            a("v_lshl_add_u32 v%d, v5, 4, v7" % (vb + 7 + jj))
        a("s_lshl_b32 s57, s50, 12")
        a("s_mul_i32 s58, s50, 3072")
        a("s_add_u32 s58, s58, 16384")
        a("s_add_u32 s59, s58, 12288")
        for st in (2, 3):
            b = st * STG
            a("s_mov_b32 s60, %d" % (128 * st))
            a("s_mov_b32 s61, %d" % (64 * 2752 * st))
            a("s_add_u32 m0, s57, %d" % b)
            a("s_nop 0")
            for jj in range(4):
                a("buffer_load_dwordx4 v%d, s[%d:%d], s60 offen offset:%d lds" % (vb + jj, sX, sX + 3, 1024 * jj))
            a("s_add_u32 m0, s58, %d" % b)
            a("s_nop 0")
            for jj in range(3):
                a("buffer_load_dwordx4 v%d, s[%d:%d], s61 offen offset:%d lds" % (vb + 4 + jj, sWG, sWG + 3, 1024 * jj))
            a("s_add_u32 m0, s59, %d" % b)
            a("s_nop 0")
            for jj in range(3):
                a("buffer_load_dwordx4 v%d, s[%d:%d], s61 offen offset:%d lds" % (vb + 7 + jj, sWU, sWU + 3, 1024 * jj))
    a("s_and_b32 s56, s50, 1")
    a("s_lshr_b32 s57, s50, 1")
    a("v_and_b32 v3, 31, v1")
    a("s_lshl_b32 s58, s56, 6")
    a("v_add_u32 v3, s58, v3")
    a("v_lshlrev_b32 v3, 7, v3")
    a("v_lshrrev_b32 v4, 5, v1")
    a("v_bfe_u32 v5, v1, 1, 3")
    a("v_xor_b32 v4, v4, v5")
    for s in range(4):
        a("v_xor_b32 v6, %d, v4" % (2 * s))
        a("v_lshl_add_u32 v%d, v6, 4, v3" % (vXa[0] + s))
        a("v_add_u32 v%d, %d, v%d" % (vXa[1] + s, 2 * STG, vXa[0] + s))
    a("v_bfe_u32 v3, v1, 4, 1")
    a("v_lshrrev_b32 v4, 5, v1")
    a("v_bfe_u32 v5, v1, 2, 2")
    a("v_lshl_add_u32 v4, v4, 3, v5")
    a("v_mul_u32_u24 v4, 192, v4")
    a("v_and_b32 v5, 3, v1")
    a("v_lshl_add_u32 v4, v5, 3, v4")
    a("v_mul_u32_u24 v5, 12288, v3")
    a("v_add_u32 v4, v4, v5")
    a("v_add_u32 v4, 16384, v4")
    a("s_mul_i32 s58, s57, 3")
    for fbk in range(3):
        a("s_add_u32 s59, s58, %d" % fbk)
        a("v_xor_b32 v5, s59, v3")
        a("v_lshl_add_u32 v%d, v5, 5, v4" % (vWa[0] + fbk))
        a("v_add_u32 v%d, %d, v%d" % (vWa[1] + fbk, 2 * STG, vWa[0] + fbk))
    a("s_waitcnt lgkmcnt(0)")
    srd(a, sH, 16, H_BYTES)
    srd(a, sDBG, 14, 256)
    a("s_lshl_b32 s58, s48, 2")
    a("s_lshl_b32 s59, s56, 1")
    a("s_add_u32 s58, s58, s59")
    a("s_mul_i32 s58, s58, 86")
    a("s_mul_i32 s59, s49, 6")
    a("s_mul_i32 s60, s57, 3")
    a("s_add_u32 s59, s59, s60")
    a("s_add_u32 s58, s58, s59")
    a("s_lshl_b32 s58, s58, 10")
    a("v_lshlrev_b32 v3, 4, v1")
    a("v_add_u32 v3, s58, v3")
    a("v_add_u32 v4, %d, v3" % (86 * 1024))
    for fbk in range(3):
        a("s_add_u32 s60, s59, %d" % fbk)
        a("s_cmp_ge_u32 s60, 86")
        a("s_cselect_b32 s%d, 0x40000000, %d" % (53 + fbk, 1024 * fbk))
    a("s_mov_b32 s61, 0xbfb8aa3b")

    def rd_x(st, s, fs, mbk):
        b = st % 4
        return lambda: a.lds("ds_read_b128 %s, v%d offset:%d" % (vr(FR[fs] + 4 * mbk, 4), vXa[b // 2] + s, (b % 2) * STG + 4096 * mbk), ("f", st, s, "x", mbk))

    def rd_w(st, s, fs, fbk, half):
        b = st % 4
        return lambda: a.lds("ds_read_b64_tr_b16 %s, v%d offset:%d" % (vr(FR[fs] + 8 + 4 * fbk + 2 * half, 2), vWa[b // 2] + fbk, (b % 2) * STG + 3072 * s + 768 * half), ("f", st, s, "w", fbk))

    def reads(st, s, fs):
        x = lambda m: rd_x(st, s, fs, m)
        w = lambda f, h: rd_w(st, s, fs, f, h)
        return [x(0), w(0, 0), w(0, 1), x(1), w(1, 0), w(1, 1), w(2, 0), w(2, 1)]

    def mfma(st, s, fs, fbk, mbk):
        f = FR[fs]
        tag = ("f", st, s)
        a.wait(lg=[tag + ("x", mbk), tag + ("w", fbk)])
        c = vr(acc(mbk, fbk), 16)
        if "fake16" in OPTS and st < NST - 1:
            for q in range(2):
                c = vr(acc(mbk, fbk) + 4 * q + 8 * (s & 1), 4)
                a("v_mfma_f32_16x16x32_bf16 %s, %s, %s, %s" % (c, vr(f + 8 + 4 * fbk, 4), vr(f + 4 * mbk, 4), "0" if (st == 0 and s < 2) else c))
                if q == 0 and mid:
                    mid.pop(0)()
            return
        a("v_mfma_f32_32x32x16_bf16 %s, %s, %s, %s" % (c, vr(f + 8 + 4 * fbk, 4), vr(f + 4 * mbk, 4), "0" if (st == 0 and s == 0) else c))

    mid = []

    def epi(fbk, mbk, t):
        c = acc(mbk, fbk)
        l = []
        for j in range(8):
            l.append(lambda j=j: a("v_mul_f32 v%d, s61, v%d" % (t + j, c + j)))
        for j in range(8):
            l.append(lambda j=j: a("v_exp_f32 v%d, v%d" % (t + j, t + j)))
        for j in range(8):
            l.append(lambda j=j: a("v_mul_f32 v%d, v%d, v%d" % (c + j, c + j, c + 8 + j)))
        for j in range(8):
            l.append(lambda j=j: a("v_add_f32 v%d, 1.0, v%d" % (t + j, t + j)))
        for j in range(8):
            l.append(lambda j=j: a("v_rcp_f32 v%d, v%d" % (t + j, t + j)))
        l.append(lambda: a("s_nop 0"))
        for j in range(8):
            l.append(lambda j=j: a("v_mul_f32 v%d, v%d, v%d" % (t + j, t + j, c + j)))
        for j in range(4):
            l.append(lambda j=j: a("v_cvt_pk_bf16_f32 v%d, v%d, v%d" % (t + 8 + j, t + 2 * j, t + 2 * j + 1)))
        l.append(lambda: a("buffer_store_dwordx4 %s, v%d, s[%d:%d], s%d offen%s" % (vr(t + 8, 4), 3 + mbk, sH, sH + 3, 53 + fbk, HST)))
        return l

    def epi_pk(fbk, mbk, t):
        c = acc(mbk, fbk)
        l = []
        for j in range(0, 8, 2):
            l.append(lambda j=j: a("v_pk_mul_f32 %s, %s, v[244:245]" % (vr(t + j, 2), vr(c + j, 2))))
        for j in range(8):
            l.append(lambda j=j: a("v_exp_f32 v%d, v%d" % (t + j, t + j)))
        for j in range(0, 8, 2):
            l.append(lambda j=j: a("v_pk_mul_f32 %s, %s, %s" % (vr(c + j, 2), vr(c + j, 2), vr(c + 8 + j, 2))))
        for j in range(0, 8, 2):
            l.append(lambda j=j: a("v_pk_add_f32 %s, %s, 1.0 op_sel_hi:[1,0]" % (vr(t + j, 2), vr(t + j, 2))))
        for j in range(8):
            l.append(lambda j=j: a("v_rcp_f32 v%d, v%d" % (t + j, t + j)))
        l.append(lambda: a("s_nop 0"))
        for j in range(0, 8, 2):
            l.append(lambda j=j: a("v_pk_mul_f32 %s, %s, %s" % (vr(t + j, 2), vr(t + j, 2), vr(c + j, 2))))
        for j in range(4):
            l.append(lambda j=j: a("v_cvt_pk_bf16_f32 v%d, v%d, v%d" % (t + 8 + j, t + 2 * j, t + 2 * j + 1)))
        l.append(lambda: a("buffer_store_dwordx4 %s, v%d, s[%d:%d], s%d offen%s" % (vr(t + 8, 4), 3 + mbk, sH, sH + 3, 53 + fbk, HST)))
        return l

    a("v_mov_b32 v244, s61")
    a("v_mov_b32 v245, s61")
    order = [(0, 0), (0, 1), (1, 0), (1, 1), (2, 0), (2, 1)]
    stamp(a, 1)
    a("s_barrier")
    stamp(a, 2)
    stamp(a, 10, True)
    for r in reads(0, 0, 0):
        r()
    fs = 0
    for st in range(NST - 1):
        if st == 4:
            a("s_cmp_lg_u32 s50, 0")
            a("s_cbranch_scc1 C_nn2")
            a("buffer_load_dwordx2 v[246:247], v248, s[%d:%d], 0 offen sc1" % (sDBG, sDBG + 3))
            a.label("C_nn2")
        for s in range(4):
            if s < 3:
                rd = reads(st, s + 1, fs ^ 1)
                sched = {0: rd[0:3], 1: rd[3:6], 2: rd[6:8]}
                if "fake16" in OPTS:
                    sched = {i: [rd[2 * i + 1]] for i in range(4)}
                    mid[:] = [rd[2 * i] for i in range(4)]
                for i, (fbk, mbk) in enumerate(order):
                    mfma(st, s, fs, fbk, mbk)
                    for r in sched.get(i, []):
                        r()
            else:
                rd = reads(st + 1, 0, fs ^ 1)
                for i, (fbk, mbk) in enumerate(order):
                    mfma(st, s, fs, fbk, mbk)
                    if i == 1:
                        a.wait(lg_all=True)
                        if "cdma" in OPTS and st in (1, 2):
                            a("s_waitcnt vmcnt(%d)" % (10 if st == 1 else 0))
                        if "bw" in OPTS:
                            a("s_memtime s[88:89]")
                            a("s_waitcnt lgkmcnt(0)")
                        a("s_barrier")
                        if "bw" in OPTS:
                            a("s_memtime s[90:91]")
                            a("s_waitcnt lgkmcnt(0)")
                            a("s_sub_u32 s88, s90, s88")
                            if st == 0:
                                a("s_mov_b32 s101, 0")
                                a("s_mov_b32 s3, 0")
                            if st < 4:
                                a("s_add_u32 s101, s101, s88")
                            else:
                                a("s_add_u32 s3, s3, s88")
                        for r in rd[0:3]:
                            r()
                    if i == 2:
                        for r in rd[3:6]:
                            r()
                    if i == 3:
                        for r in rd[6:8]:
                            r()
                    if st == NST - 2 and i >= 4:
                        sets = [fs ^ 1, fs, 2, 3]
                        ss = i - 3
                        if ss == 2:
                            rd_x(NST - 1, 2, sets[2], 0)(); rd_w(NST - 1, 2, sets[2], 0, 0)(); rd_w(NST - 1, 2, sets[2], 0, 1)()
                            rd_x(NST - 1, 3, sets[3], 0)(); rd_w(NST - 1, 3, sets[3], 0, 0)(); rd_w(NST - 1, 3, sets[3], 0, 1)()
            fs ^= 1
    st = NST - 1
    sets = [fs, fs ^ 1, 2, 3]
    pend = [rd_x(st, 1, sets[1], 0), rd_w(st, 1, sets[1], 0, 0), rd_w(st, 1, sets[1], 0, 1)]
    pend += [rd_x(st, s, sets[s], 1) for s in (1, 2, 3)]
    for f_ in (1, 2):
        for s in (1, 2, 3):
            pend += [rd_w(st, s, sets[s], f_, 0), rd_w(st, s, sets[s], f_, 1)]
    TMP = [8, 20]
    a("s_waitcnt vmcnt(0)")

    def tile_mfmas(ti):
        fbk, mbk = order[ti]
        return [(lambda s=s: mfma(st, s, sets[s], fbk, mbk)) for s in ([0, 2, 3, 1] if ti == 0 else range(4))]

    for ti in (0, 1):
        for m in tile_mfmas(ti):
            m()
            for _ in range(3):
                if pend:
                    pend.pop(0)()
    assert not pend
    a.wait(lg_all=True)
    a("s_barrier")
    for ti in range(6):
        fbk, mbk = order[ti]
        if ti + 2 < 6:
            ev = epi(fbk, mbk, TMP[ti % 2])
            ms = tile_mfmas(ti + 2)
            step = len(ev) // 4
            for k, th in enumerate(ev):
                if k % step == 0 and ms:
                    ms.pop(0)()
                th()
            assert not ms
            if ti + 2 == 5:
                stamp(a, 3)
                stamp(a, 11, True)
        else:
            for th in epi_pk(fbk, mbk, TMP[ti % 2]):
                th()
    stamp(a, 4)
    a("s_barrier")
    a("s_waitcnt vmcnt(0)")
    stamp(a, 8)
    a("s_barrier")
    stamp(a, 9)
    a("s_cmp_lg_u32 s50, 0")
    a("s_cbranch_scc1 C_p2b")
    getnonce(a, "a")
    a("s_lshl_b32 s58, s48, 8")
    a("s_lshl_b32 s59, s49, 3")
    a("s_add_u32 s58, s58, s59")
    a("s_add_u32 s58, s58, %d" % FLAG_OFF)
    a("v_mov_b32 v3, s58")
    a("s_mov_b64 exec, 1")
    a("buffer_store_dwordx2 v[246:247], v3, s[%d:%d], 0 offen sc1" % (sH, sH + 3))
    a("s_mov_b64 exec, -1")
    a("s_branch C_p2b")
    a.label("C_p2")
    a("s_waitcnt vmcnt(0) lgkmcnt(0)")
    srd(a, sH, 16, H_BYTES)
    a("s_barrier")
    a("s_cmp_lg_u32 s50, 0")
    a("s_cbranch_scc1 C_p2b")
    a("v_mov_b32 v246, 0")
    a("v_mov_b32 v247, 0")
    getnonce(a, "b")
    a.label("C_p2b")
    p2_setup(a)
    a("s_barrier")
    a("s_cmp_lg_u32 s50, 0")
    a("s_cbranch_scc1 P2_main")
    poll(a)
    a("s_branch P2_main")

    a.label("L_loader")
    a.vm = []
    a.lg = []
    vXo, vWgo, vWuo, vWd = 8, 12, 15, 18
    a("s_sub_u32 s56, s50, 4")
    a("v_lshrrev_b32 v3, 3, v1")
    a("v_and_b32 v4, 7, v1")
    a("v_lshrrev_b32 v5, 4, v1")
    a("s_lshl_b32 s58, s48, 7")
    a("s_lshl_b32 s59, s56, 5")
    a("s_add_u32 s58, s58, s59")
    a("v_add_u32 v6, s58, v3")
    a("v_lshlrev_b32 v6, 10, v6")
    for jj in range(4):
        a("v_add_u32 v7, %d, v5" % (4 * jj))
        a("v_and_b32 v7, 7, v7")
        a("v_xor_b32 v7, v7, v4")
        a("v_lshl_add_u32 v%d, v7, 4, v6" % (vXo + jj))
        if jj:
            a("v_add_u32 v%d, %d, v%d" % (vXo + jj, jj * (8192 - 1024), vXo + jj))
    a("s_mul_i32 s58, s56, 192")
    a("s_mul_i32 s59, s49, 192")
    a("s_mov_b32 s60, 43691")
    a("s_mov_b32 s61, 2752")
    for jj in range(3):
        a("v_add_u32 v6, s58, v1")
        if jj:
            a("v_add_u32 v6, %d, v6" % (64 * jj))
        a("v_mul_lo_u32 v7, v6, s60")
        a("v_lshrrev_b32 v7, 19, v7")
        a("v_mul_u32_u24 v19, 12, v7")
        a("v_sub_u32 v19, v6, v19")
        a("v_mul_lo_u32 v7, v7, s61")
        a("v_add_u32 v7, s59, v7")
        if jj:
            a("v_subrev_u32 v7, %d, v7" % (1024 * jj))
        a("v_lshl_add_u32 v%d, v19, 4, v7" % (vWgo + jj))
        a("v_xor_b32 v19, 2, v19")
        a("v_lshl_add_u32 v%d, v19, 4, v7" % (vWuo + jj))
    a("s_lshl_b32 s58, s56, 3")
    a("v_add_u32 v6, s58, v3")
    a("v_lshlrev_b32 v6, 10, v6")
    a("s_lshl_b32 s58, s52, 7")
    a("v_add_u32 v6, s58, v6")
    a("v_bfe_u32 v7, v1, 4, 1")
    a("v_lshlrev_b32 v7, 2, v7")
    a("v_xor_b32 v7, v7, v4")
    a("v_lshl_add_u32 v%d, v7, 4, v6" % vWd)
    a("s_lshl_b32 s57, s56, 12")
    a("s_mul_i32 s58, s56, 3072")
    a("s_add_u32 s58, s58, 16384")
    a("s_add_u32 s59, s58, 12288")
    if "rot" in OPTS:
        a("s_lshl_b32 s55, s49, 1")
        a("s_add_u32 s55, s55, s48")
        a("s_and_b32 s55, s55, 7")
    else:
        a("s_mov_b32 s55, 0")
    a("s_lshl_b32 s60, s55, 7")
    a("s_mul_i32 s61, s55, %d" % (64 * 2752))
    a("s_lshl_b32 s18, s56, 10")
    a("s_waitcnt lgkmcnt(0)")
    srd(a, sX, 4, X_BYTES)
    srd(a, sWG, 6, W_BYTES)
    srd(a, sWU, 8, W_BYTES)
    srd(a, sWD, 10, W_BYTES)
    srd(a, sH, 16, H_BYTES)

    def dma(st):
        if "nodma" in OPTS and st > 3:
            return
        b = (st % 4) * STG
        a("s_add_u32 m0, s57, %d" % b)
        a("s_nop 0")
        for jj in range(4):
            a.vmem("buffer_load_dwordx4 v%d, s[%d:%d], s60 offen offset:%d lds" % (vXo + jj, sX, sX + 3, 1024 * jj), ("d", st))
        a("s_add_u32 m0, s58, %d" % b)
        a("s_nop 0")
        for jj in range(3):
            a.vmem("buffer_load_dwordx4 v%d, s[%d:%d], s61 offen offset:%d lds" % (vWgo + jj, sWG, sWG + 3, 1024 * jj), ("d", st))
        a("s_add_u32 m0, s59, %d" % b)
        a("s_nop 0")
        for jj in range(3):
            a.vmem("buffer_load_dwordx4 v%d, s[%d:%d], s61 offen offset:%d lds" % (vWuo + jj, sWU, sWU + 3, 1024 * jj), ("d", st))
        a("s_add_u32 s55, s55, 1")
        a("s_and_b32 s55, s55, 7")
        a("s_lshl_b32 s60, s55, 7")
        a("s_mul_i32 s61, s55, %d" % (64 * 2752))

    def wd1(reg, t, slot):
        a("s_add_u32 m0, s18, %d" % (reg * STG + slot * 4096))
        a("s_mov_b32 s19, %d" % ((352 * reg + 32 * t) * 1024))
        a.vmem("buffer_load_dwordx4 v%d, s[%d:%d], s19 offen lds" % (vWd, sWD, sWD + 3), ("p", reg, t))

    def l2warm():
        a("s_lshr_b32 s19, s2, 3")
        a("s_lshl_b32 s19, s19, 2")
        a("s_add_u32 s19, s19, s56")
        a("v_lshlrev_b32 v20, 4, v1")
        a("s_mul_i32 s3, s19, 3")
        a("s_add_u32 s3, s3, 1056")
        a("s_lshl_b32 s3, s3, 10")
        for i in range(3):
            a.vmem("buffer_load_dwordx4 v[%d:%d], v20, s[%d:%d], s3 offen offset:%d" % (28 + 4 * i, 31 + 4 * i, sWD, sWD + 3, 1024 * i), "j")
        a("s_lshr_b32 s3, s19, 5")
        a("s_mul_i32 s3, s3, 352")
        a("s_and_b32 s19, s19, 31")
        a("s_add_u32 s3, s3, s19")
        a("s_lshl_b32 s3, s3, 10")
        a.vmem("buffer_load_dwordx4 v[40:43], v20, s[%d:%d], s3 offen" % (sWD, sWD + 3), "j")

    NPRE = 3
    for o in OPTS:
        if o.startswith("pre"):
            NPRE = int(o[3:])
    SUN = 10
    for o in OPTS:
        if o.startswith("sun"):
            SUN = int(o[3:])

    def wdreg(reg):
        wd1(reg, 10, 0)
        for t in range(1, 10):
            wd1(reg, t, t)

    rest = [(r, 10) for r in range(NPRE, 3)]
    for t in list(range(1, 10)) + [0]:
        for r in range(NPRE, 4):
            if t == 0 and r < 3:
                continue
            rest.append((r, t))

    def issue(lst):
        for r, t in lst:
            wd1(r, t, 0 if t == 10 else t)

    if "wfirst" in OPTS:
        a("s_barrier")
    a("s_cmp_ge_u32 s49, 15")
    a("s_cbranch_scc1 LD_nop1")
    stamp(a, 1)
    dma(0)
    dma(1)
    a.wait(vm=[("d", 0)])
    a("s_barrier")
    stamp(a, 2)
    if "cdma" in OPTS:
        a("s_add_u32 s55, s55, 2")
        a("s_lshl_b32 s60, s55, 7")
        a("s_mul_i32 s61, s55, %d" % (64 * 2752))
    else:
        dma(2)
        dma(3)
    for st in range(NST - 1):
        a.wait(vm=[("d", st + 1)])
        a("s_barrier")
        if st + 4 < NST:
            dma(st + 4)
            if st == 1:
                a("s_lshl_b32 s19, s2, 2")
                a("s_add_u32 s19, s19, s56")
                a("s_mul_i32 s3, s19, 1376")
                a("v_lshlrev_b32 v20, 4, v1")
                a("s_mov_b32 s19, 352")
                a("v_cmp_gt_u32 vcc, s19, v20")
                a.vmem("buffer_load_dwordx4 v[28:31], v20, s[%d:%d], s3 offen" % (sWD, sWD + 3), "j")
                a("s_and_saveexec_b64 s[62:63], vcc")
                a.vmem("buffer_load_dwordx4 v[32:35], v20, s[%d:%d], s3 offen offset:1024" % (sWD, sWD + 3), "j")
                a("s_mov_b64 exec, s[62:63]")
        elif st - 4 < NPRE:
            wdreg(st - 4)
    a("s_barrier")
    stamp(a, 3)
    a("s_barrier")
    issue(rest[:SUN])
    a.wait(vm=[("p", r, 10) for r in range(3)])
    a("s_branch LD_e")
    a.label("LD_nop1")
    a.vm = []
    for reg in range(NPRE):
        wdreg(reg)
    issue(rest[:SUN])
    a.wait(vm=[("p", r, 10) for r in range(3)])
    a.label("LD_e")
    a("s_barrier")
    stamp(a, 4)
    a.vm = ["old"] * 20
    issue(rest[SUN:])
    a.vm.append("last")
    a.lines.append("    ; marker")
    p2_setup(a)
    a("s_barrier")
    for reg in range(3):
        a("s_add_u32 m0, s18, %d" % (reg * STG))
        a("s_mov_b32 s19, %d" % (352 * reg * 1024))
        a.vmem("buffer_load_dwordx4 v%d, s[%d:%d], s19 offen lds" % (vWd, sWD, sWD + 3), "p0")
    a.wait(vm=["last"])
    stamp(a, 8)
    p2_main(a, a.vm)
    a.label("L_end")
    a("s_endpgm")
    return a.text()


HEADER = """; Kernarg layout for this problem (56 bytes, ptrs only, base s[0:1]):
; @launch grid=(256,1,1) block=(512,1,1) lds=163840
.amdgcn_target "amdgcn-amd-amdhsa--gfx950"
.text
.globl standalone__swiglu_ffn__prompt_kernel
.p2align 8
.type standalone__swiglu_ffn__prompt_kernel,@function
"""

KD = """.section .rodata,"a"
.p2align 6
.amdhsa_kernel standalone__swiglu_ffn__prompt_kernel
  .amdhsa_next_free_vgpr 256
  .amdhsa_next_free_sgpr 102
  .amdhsa_accum_offset 256
  .amdhsa_group_segment_fixed_size 0
  .amdhsa_kernarg_size 56
  .amdhsa_user_sgpr_count 2
  .amdhsa_user_sgpr_kernarg_segment_ptr 1
  .amdhsa_system_sgpr_workgroup_id_x 1
.end_amdhsa_kernel
"""


def main():
    out = HEADER + gen() + KD
    path = sys.argv[1] if len(sys.argv) > 1 else "standalone__swiglu_ffn__prompt.s"
    open(path, "w").write(out)


main()
```

```python
import sys

M, D, F = 2048, 512, 1376
KB16 = F // 16
H_BYTES = 0x1000000
FLAG_OFF = 0x800000
X_BYTES = M * D * 2
W_BYTES = D * F * 2
OUT_BYTES = M * D * 2

OPTS = set(sys.argv[2:])
TS = "ts" in OPTS
HLD = " sc1"
HST = " sc1"


class Asm:
    def __init__(self):
        self.lines = []
        self.vm = []
        self.lg = []

    def __call__(self, s):
        self.lines.append("    " + s)

    def label(self, l):
        self.lines.append(l + ":")

    def vmem(self, s, tag):
        self(s)
        self.vm.append(tag)
        assert len(self.vm) <= 63, "too many vmem outstanding"

    def lds(self, s, tag):
        self(s)
        self.lg.append(tag)

    def _need(self, q, tags):
        idx = -1
        for i, t in enumerate(q):
            if t in tags:
                idx = i
        if idx < 0:
            return None
        return len(q) - 1 - idx

    def wait(self, vm=(), lg=(), vm_all=False, lg_all=False):
        parts = []
        if vm_all:
            parts.append("vmcnt(0)")
            self.vm = []
        else:
            n = self._need(self.vm, set(vm))
            if n is not None:
                parts.append("vmcnt(%d)" % n)
                self.vm = self.vm[len(self.vm) - n:] if n else []
        if lg_all:
            if self.lg:
                parts.append("lgkmcnt(0)")
                self.lg = []
        else:
            n = self._need(self.lg, set(lg))
            if n is not None:
                n = min(n, 15)
                parts.append("lgkmcnt(%d)" % n)
                self.lg = self.lg[len(self.lg) - n:] if n else []
        if parts:
            self("s_waitcnt " + " ".join(parts))

    def text(self):
        return "\n".join(self.lines) + "\n"


def vr(a, n):
    return "v[%d:%d]" % (a, a + n - 1)


def srd(a, dst, src, sz):
    a("s_mov_b32 s%d, s%d" % (dst, src))
    a("s_and_b32 s%d, s%d, 0xffff" % (dst + 1, src + 1))
    a("s_mov_b32 s%d, %d" % (dst + 2, sz))
    a("s_mov_b32 s%d, 0x00020000" % (dst + 3))


def stamp(a, i, cyc=False):
    if not TS:
        return
    a("%s s[%d:%d]" % ("s_memtime" if cyc else "s_memrealtime", 64 + 2 * i, 65 + 2 * i))
    a("s_waitcnt lgkmcnt(0)")
    a.lg = []


def stamp_store(a, kidx, wave, endlabel):
    a("s_memrealtime s[78:79]")
    a("s_memtime s[94:95]")
    a("s_waitcnt lgkmcnt(0)")
    a("s_cmp_lg_u32 s50, %d" % wave)
    a("s_cbranch_scc1 %s" % endlabel)
    a("s_mov_b64 exec, -1")
    if "dbgts" in OPTS:
        if kidx == 1:
            a("s_branch %s" % endlabel)
            return
        srd(a, sDBG, 14, 256)
        a("s_mov_b32 s100, 8")
        a("s_cmp_eq_u32 s2, 0")
        a("s_cbranch_scc1 TS_d")
        a("s_mov_b32 s100, 36")
        a("s_cmp_eq_u32 s2, 200")
        a("s_cbranch_scc0 %s" % endlabel)
        a.label("TS_d")
        a("v_mov_b32 v2, 0")
        for n, i in enumerate([0, 2, 3, 4, 9, 5, 7]):
            a("v_mov_b32 v4, s%d" % (64 + 2 * i))
            a("buffer_store_dword v4, v2, s[%d:%d], s100 offen offset:%d" % (sDBG, sDBG + 3, 4 * n))
            a("s_nop 2")
        return
    a("s_mov_b32 s96, s16")
    a("s_and_b32 s97, s17, 0xffff")
    a("s_mov_b32 s98, 0x2000000")
    a("s_mov_b32 s99, 0x00020000")
    a("s_lshl_b32 s100, s2, 7")
    a("s_add_u32 s100, s100, %d" % ((16 << 20) + kidx * 256 * 128))
    a("v_mov_b32 v2, 0")
    for i in range(16):
        a("v_mov_b32 v4, s%d" % (64 + 2 * i))
        a("v_mov_b32 v5, s%d" % (65 + 2 * i))
        a("buffer_store_dwordx2 v[4:5], v2, s[96:99], s100 offen offset:%d" % (8 * i))
        a("s_nop 2")


STG = 40960
NST = 8
sX, sWG, sWU, sWD, sOUT, sH, sDBG = 20, 24, 28, 32, 36, 40, 44

NIT = 11
PDH = 6 if "pdh6" in OPTS else 4
ACC2 = 224
W10 = 208
WF = [176, 192]
HR = 88
vH, vA = 24, 26


def p2_setup(a):
    srd(a, sOUT, 12, OUT_BYTES)
    a("s_and_b32 s56, s50, 3")
    a("s_lshr_b32 s57, s50, 2")
    a("s_lshl_b32 s58, s51, 1")
    a("s_add_u32 s59, s58, s57")
    a("s_mul_i32 s59, s59, 86")
    a("s_mul_i32 s61, s56, 22")
    a("s_add_u32 s59, s59, s61")
    a("s_lshl_b32 s59, s59, 10")
    a("v_lshlrev_b32 v3, 4, v1")
    a("v_add_u32 v%d, s59, v3" % vH)
    a("s_mul_i32 s62, s56, %d" % STG)
    a("s_cmp_eq_u32 s56, 3")
    a("s_cselect_b32 s63, 0, %d" % (10 * 2048))
    a("s_and_b32 s58, s56, 1")
    a("s_lshr_b32 s59, s56, 1")
    a("v_lshrrev_b32 v3, 5, v1")
    a("v_bfe_u32 v4, v1, 2, 2")
    a("v_lshl_add_u32 v3, v3, 2, v4")
    a("v_lshlrev_b32 v3, 7, v3")
    a("v_bfe_u32 v4, v1, 3, 1")
    a("v_xor_b32 v4, s58, v4")
    a("v_lshl_add_u32 v3, v4, 6, v3")
    a("v_bfe_u32 v4, v1, 4, 1")
    a("v_xor_b32 v4, s59, v4")
    a("v_lshl_add_u32 v3, v4, 5, v3")
    a("v_and_b32 v4, 3, v1")
    a("v_lshl_add_u32 v3, v4, 3, v3")
    a("v_add_u32 v%d, s62, v3" % vA)
    a("v_xor_b32 v%d, 64, v%d" % (vA + 1, vA))
    for ks in range(2):
        for da in range(2):
            for half in range(2):
                a("ds_read_b64_tr_b16 %s, v%d offset:%d" % (vr(W10 + (ks * 2 + da) * 4 + 2 * half, 2), vA + da, ks * 2048 + half * 1024))
    a("s_waitcnt lgkmcnt(0)")
    a.lg = []
    P2S[0] += 1
    a("s_cmp_lg_u32 s56, 3")
    a("s_cbranch_scc1 P2S_%d" % P2S[0])
    for j in range(16):
        a("v_mov_b32 v%d, 0" % (W10 + j))
    a.label("P2S_%d" % P2S[0])


P2S = [0]


def p2_main(a, pre_vm):
    a.label("P2_main")
    a.vm = list(pre_vm)
    a.lg = []
    a("s_barrier")
    stamp(a, 5)
    def hloads(i):
        if i == 0:
            so = "s63"
        elif i == NIT - 1:
            so = "0"
        else:
            a("s_mov_b32 s58, %d" % (i * 2048))
            so = "s58"
        for ks in range(2):
            a.vmem("buffer_load_dwordx4 %s, v%d, s[%d:%d], %s offen offset:%d%s" % (
                vr(HR + i * 8 + ks * 4, 4), vH, sH, sH + 3, so, 1024 * ks, HLD), ("h", i))

    def trreads(i, f):
        t = 0 if i == NIT - 1 else i
        l = []
        for ks in range(2):
            for da in range(2):
                for half in range(2):
                    l.append((lambda ks=ks, da=da, half=half: a.lds("ds_read_b64_tr_b16 %s, v%d offset:%d" % (
                        vr(f + (ks * 2 + da) * 4 + 2 * half, 2), vA + da, t * 4096 + ks * 2048 + half * 1024), ("t", i, ks, da))))
        return l

    for i in range(PDH):
        hloads(i)
    for i in range(NIT):
        f = W10 if i == 0 else WF[i % 2]
        rd = []
        if i + 1 < NIT:
            rd = trreads(i + 1, WF[(i + 1) % 2])
        a.wait(vm=[("h", i)])
        n = 0
        for ks in range(2):
            for da in range(2):
                a.wait(lg=[("t", i, ks, da)])
                c = vr(ACC2 + da * 16, 16)
                a("v_mfma_f32_32x32x16_bf16 %s, %s, %s, %s" % (c, vr(f + (ks * 2 + da) * 4, 4), vr(HR + i * 8 + ks * 4, 4),
                                                               "0" if (i == 0 and ks == 0) else c))
                if rd:
                    rd[2 * n]()
                    rd[2 * n + 1]()
                n += 1
            if ks == 0 and i + PDH < NIT:
                hloads(i + PDH)
        if i == NIT - 4:
            a.wait(vm=["p0"])
            a("s_barrier")
    stamp(a, 6)
    a("v_lshlrev_b32 v3, 4, v1")
    a("s_mul_i32 s58, s57, 6144")
    a("s_add_u32 s58, s58, 4096")
    a("v_add_u32 v3, s58, v3")
    a("v_add_u32 v4, s62, v3")
    for x in range(1, 4):
        a("s_xor_b32 s58, s56, %d" % x)
        a("s_mul_i32 s58, s58, %d" % STG)
        a("v_add_u32 v%d, s58, v3" % (4 + x))
    a("s_nop 7")
    for p in range(1, 4):
        c = ACC2 + (p & 1) * 16 + (p >> 1) * 8
        for j in range(2):
            a.lds("ds_write_b128 v4, %s offset:%d" % (vr(c + 4 * j, 4), (p - 1) * 2048 + j * 1024), "r")
    a.wait(lg_all=True)
    a("s_barrier")
    for x in range(1, 4):
        for j in range(2):
            a.lds("ds_read_b128 %s, v%d offset:%d" % (vr(64 + (x - 1) * 8 + 4 * j, 4), 4 + x, (x - 1) * 2048 + j * 1024), ("q", x))
    a("s_lshl_b32 s58, s51, 6")
    a("s_lshl_b32 s59, s57, 5")
    a("s_add_u32 s58, s58, s59")
    a("v_and_b32 v3, 31, v1")
    a("v_add_u32 v3, s58, v3")
    a("v_lshlrev_b32 v3, 10, v3")
    a("s_lshl_b32 s58, s52, 7")
    a("s_and_b32 s59, s56, 1")
    a("s_lshl_b32 s59, s59, 6")
    a("s_add_u32 s58, s58, s59")
    a("s_lshr_b32 s59, s56, 1")
    a("s_lshl_b32 s59, s59, 5")
    a("s_add_u32 s58, s58, s59")
    a("v_add_u32 v3, s58, v3")
    a("v_lshrrev_b32 v8, 5, v1")
    a("v_lshl_add_u32 v3, v8, 4, v3")
    for x in range(1, 4):
        a.wait(lg=[("q", x)])
        for j in range(8):
            a("v_add_f32 v%d, v%d, v%d" % (ACC2 + j, ACC2 + j, 64 + (x - 1) * 8 + j))
    for j in range(4):
        a("v_cvt_pk_bf16_f32 v%d, v%d, v%d" % (32 + j, ACC2 + 2 * j, ACC2 + 2 * j + 1))
    a("s_nop 1")
    a("v_permlane32_swap_b32 v32, v34")
    a("v_permlane32_swap_b32 v33, v35")
    a("buffer_store_dwordx4 v[32:35], v3, s[%d:%d], 0 offen%s" % (sOUT, sOUT + 3, " sc1" if "osc1" in OPTS else (" nt" if "ont" in OPTS else "")))
    for o in OPTS:
        if o.startswith("spin"):
            a("s_memrealtime s[56:57]")
            a("s_waitcnt lgkmcnt(0)")
            a("s_add_u32 s58, s56, %d" % int(o[4:]))
            a.label("SPIN")
            a("s_memrealtime s[56:57]")
            a("s_waitcnt lgkmcnt(0)")
            a("s_sub_u32 s59, s58, s56")
            a("s_cmp_gt_i32 s59, 0")
            a("s_cbranch_scc1 SPIN")
    if TS:
        a("s_waitcnt vmcnt(0)")
        a("s_cmp_eq_u32 s50, 4")
        a("s_cbranch_scc1 TS_l")
        stamp_store(a, 0, 0, "L_end")
        a("s_endpgm")
        a.label("TS_l")
        stamp_store(a, 1, 4, "L_end")


def getnonce(a, tag):
    a("s_mov_b32 s59, 0")
    a.label("C_gn" + tag)
    a("v_readfirstlane_b32 s60, v246")
    a("s_nop 3")
    a("s_cmp_lg_u32 s60, 0")
    a("s_cbranch_scc1 C_gnd" + tag)
    a("s_add_u32 s59, s59, 1")
    a("s_cmp_ge_u32 s59, 0x400000")
    a("s_cbranch_scc1 C_gnd" + tag)
    a("s_sleep 8")
    a("buffer_load_dwordx2 v[246:247], v248, s[%d:%d], 0 offen sc1" % (sDBG, sDBG + 3))
    a("s_waitcnt vmcnt(0)")
    a("s_branch C_gn" + tag)
    a.label("C_gnd" + tag)


def poll(a):
    a("s_lshr_b32 s58, s51, 1")
    a("s_lshl_b32 s58, s58, 8")
    a("s_add_u32 s58, s58, %d" % FLAG_OFF)
    a("v_lshlrev_b32 v3, 3, v1")
    a("v_add_u32 v3, s58, v3")
    a("s_mov_b32 s59, 0")
    a("s_mov_b64 exec, 0x7fff")
    NP = 2
    for k in range(NP - 1):
        a("buffer_load_dwordx2 v[%d:%d], v3, s[%d:%d], 0 offen sc1" % (32 + 2 * k, 33 + 2 * k, sH, sH + 3))
        a("s_sleep 3")
    a.label("C_poll")
    for k in range(NP):
        kk = (k + NP - 1) % NP
        a("buffer_load_dwordx2 v[%d:%d], v3, s[%d:%d], 0 offen sc1" % (32 + 2 * kk, 33 + 2 * kk, sH, sH + 3))
        a("s_waitcnt vmcnt(%d)" % (NP - 1))
        a("v_cmp_eq_u64 vcc, v[%d:%d], v[246:247]" % (32 + 2 * k, 33 + 2 * k))
        a("s_add_u32 s59, s59, 1")
        a("s_nop 3")
        a("s_cmp_eq_u64 vcc, exec")
        a("s_cbranch_scc1 C_polled")
        a("s_sleep 3")
    a("s_cmp_ge_u32 s59, 0x400000")
    a("s_cbranch_scc0 C_poll")
    a.label("C_polled")
    a("s_waitcnt vmcnt(0)")
    a("s_mov_b64 exec, -1")


def gen():
    a = Asm()
    a.label("standalone__swiglu_ffn__prompt_kernel")
    a("s_cmp_ge_u32 s2, 256")
    a("s_cbranch_scc1 L_end")
    if "badmap" in OPTS:
        a("s_mul_i32 s2, s2, 37")
        a("s_add_u32 s2, s2, 11")
        a("s_and_b32 s2, s2, 255")
        a("s_lshr_b32 s3, s2, 3")
        a("s_xor_b32 s2, s2, s3")
    stamp(a, 0)
    if TS:
        a("s_memtime s[92:93]")
    a("s_load_dwordx8 s[4:11], s[0:1], 0")
    a("s_load_dwordx4 s[12:15], s[0:1], 32")
    a("s_load_dwordx2 s[16:17], s[0:1], 48")
    a("v_lshrrev_b32 v2, 6, v0")
    a("v_and_b32 v1, 63, v0")
    a("s_and_b32 s53, s2, 7")
    a("v_readfirstlane_b32 s50, v2")
    a("s_lshr_b32 s54, s2, 3")
    a("s_and_b32 s48, s53, 1")
    a("s_lshl_b32 s48, s48, 3")
    a("s_and_b32 s55, s54, 7")
    a("s_add_u32 s48, s48, s55")
    a("s_lshr_b32 s49, s53, 1")
    a("s_lshl_b32 s49, s49, 2")
    a("s_lshr_b32 s55, s54, 3")
    a("s_add_u32 s49, s49, s55")
    a("s_lshl_b32 s51, s53, 2")
    a("s_and_b32 s55, s54, 3")
    a("s_add_u32 s51, s51, s55")
    a("s_lshr_b32 s52, s54, 2")
    a("s_cmp_ge_u32 s50, 4")
    a("s_cbranch_scc1 L_loader")

    ACC = 128
    def acc(mbk, fbk):
        return ACC + (mbk * 3 + fbk) * 16
    FR = [32, 52, 100, 224]
    vXa = [72, 88]
    vWa = [76, 92]
    if "nowarm" not in OPTS:
        a("s_waitcnt lgkmcnt(0)")
        srd(a, sX, 4, X_BYTES)
        srd(a, sWG, 6, W_BYTES)
        srd(a, sWU, 8, W_BYTES)
        srd(a, sWD, 10, W_BYTES)
        if "v4" in OPTS:
            a("s_lshr_b32 s56, s2, 3")
            a("s_lshl_b32 s56, s56, 2")
            a("s_add_u32 s56, s56, s50")
            a("s_and_b32 s57, s2, 1")
            a("s_lshl_b32 s57, s57, 7")
            a("s_add_u32 s57, s57, s56")
            a("s_lshl_b32 s57, s57, 13")
            a("s_bfe_u32 s58, s2, 0x20001")
            a("s_mul_i32 s58, s58, 768")
            a("s_mul_i32 s59, s56, %d" % (4 * 2752))
            a("s_add_u32 s58, s58, s59")
            a("v_lshlrev_b32 v3, 4, v1")
            a("s_mov_b32 exec_hi, 0xffff")
            for r in range(4):
                if r:
                    a("s_add_u32 s58, s58, 2752")
                a("buffer_load_dwordx4 v[8:11], v3, s[%d:%d], s58 offen" % (sWG, sWG + 3))
                a("buffer_load_dwordx4 v[12:15], v3, s[%d:%d], s58 offen" % (sWU, sWU + 3))
            a("s_mov_b64 exec, -1")
            for r in range(8):
                if r == 4:
                    a("s_add_u32 s57, s57, 4096")
                a("buffer_load_dwordx4 v[%d:%d], v3, s[%d:%d], s57 offen offset:%d" % (16 + 4 * (r & 1), 19 + 4 * (r & 1), sX, sX + 3, 1024 * (r & 3)))
        else:
            a("s_lshl_b32 s56, s2, 2")
            a("s_add_u32 s56, s56, s50")
            a("s_lshl_b32 s57, s56, 11")
            a("s_mul_i32 s58, s56, 1376")
            a("v_lshlrev_b32 v3, 4, v1")
            a("s_mov_b32 s59, 352")
            a("v_cmp_gt_u32 s[60:61], s59, v3")
            a("buffer_load_dwordx4 v[8:11], v3, s[%d:%d], s57 offen" % (sX, sX + 3))
            a("buffer_load_dwordx4 v[12:15], v3, s[%d:%d], s57 offen offset:1024" % (sX, sX + 3))
            wl = (sWG, sWU)
            for k, r in enumerate(wl):
                a("buffer_load_dwordx4 v[16:19], v3, s[%d:%d], s58 offen" % (r, r + 3))
            a("s_and_saveexec_b64 s[62:63], s[60:61]")
            for k, r in enumerate(wl):
                a("buffer_load_dwordx4 v[20:23], v3, s[%d:%d], s58 offen offset:1024" % (r, r + 3))
            a("s_mov_b64 exec, s[62:63]")
        if "wfirst" in OPTS:
            a("s_waitcnt vmcnt(0)")
            a("s_barrier")
    a("s_waitcnt lgkmcnt(0)")
    srd(a, sDBG, 14, 256)
    a("s_or_b32 s56, s2, s50")
    a("s_cmp_lg_u32 s56, 0")
    a("s_cbranch_scc1 C_nononce")
    a("s_memrealtime s[56:57]")
    a("s_waitcnt lgkmcnt(0)")
    a("s_or_b32 s56, s56, 1")
    a("v_mov_b32 v4, s56")
    a("v_mov_b32 v5, s57")
    a("v_mov_b32 v6, 0")
    a("s_mov_b64 exec, 1")
    a("buffer_store_dwordx2 v[4:5], v6, s[%d:%d], 0 offen sc1" % (sDBG, sDBG + 3))
    a("s_mov_b64 exec, -1")
    a.label("C_nononce")
    a("v_mov_b32 v248, 0")
    a("s_cmp_ge_u32 s49, 15")
    a("s_cbranch_scc1 C_p2")
    if "cdma" in OPTS:
        vb = 104
        a("v_lshrrev_b32 v3, 3, v1")
        a("v_and_b32 v4, 7, v1")
        a("v_lshrrev_b32 v5, 4, v1")
        a("s_lshl_b32 s58, s48, 7")
        a("s_lshl_b32 s59, s50, 5")
        a("s_add_u32 s58, s58, s59")
        a("v_add_u32 v6, s58, v3")
        a("v_lshlrev_b32 v6, 10, v6")
        for jj in range(4):
            a("v_add_u32 v7, %d, v5" % (4 * jj))
            a("v_and_b32 v7, 7, v7")
            a("v_xor_b32 v7, v7, v4")
            a("v_lshl_add_u32 v%d, v7, 4, v6" % (vb + jj))
            if jj:
                a("v_add_u32 v%d, %d, v%d" % (vb + jj, jj * (8192 - 1024), vb + jj))
        a("s_mul_i32 s58, s50, 192")
        a("s_mul_i32 s59, s49, 192")
        a("s_mov_b32 s60, 43691")
        a("s_mov_b32 s61, 2752")
        for jj in range(3):
            a("v_add_u32 v6, s58, v1")
            if jj:
                a("v_add_u32 v6, %d, v6" % (64 * jj))
            a("v_mul_lo_u32 v7, v6, s60")
            a("v_lshrrev_b32 v7, 19, v7")
            a("v_mul_u32_u24 v5, 12, v7")
            a("v_sub_u32 v5, v6, v5")
            a("v_mul_lo_u32 v7, v7, s61")
            a("v_add_u32 v7, s59, v7")
            if jj:
                a("v_subrev_u32 v7, %d, v7" % (1024 * jj))
            a("v_lshl_add_u32 v%d, v5, 4, v7" % (vb + 4 + jj))
            a("v_xor_b32 v5, 2, v5")
            a("v_lshl_add_u32 v%d, v5, 4, v7" % (vb + 7 + jj))
        a("s_lshl_b32 s57, s50, 12")
        a("s_mul_i32 s58, s50, 3072")
        a("s_add_u32 s58, s58, 16384")
        a("s_add_u32 s59, s58, 12288")
        for st in (2, 3):
            b = st * STG
            a("s_mov_b32 s60, %d" % (128 * st))
            a("s_mov_b32 s61, %d" % (64 * 2752 * st))
            a("s_add_u32 m0, s57, %d" % b)
            a("s_nop 0")
            for jj in range(4):
                a("buffer_load_dwordx4 v%d, s[%d:%d], s60 offen offset:%d lds" % (vb + jj, sX, sX + 3, 1024 * jj))
            a("s_add_u32 m0, s58, %d" % b)
            a("s_nop 0")
            for jj in range(3):
                a("buffer_load_dwordx4 v%d, s[%d:%d], s61 offen offset:%d lds" % (vb + 4 + jj, sWG, sWG + 3, 1024 * jj))
            a("s_add_u32 m0, s59, %d" % b)
            a("s_nop 0")
            for jj in range(3):
                a("buffer_load_dwordx4 v%d, s[%d:%d], s61 offen offset:%d lds" % (vb + 7 + jj, sWU, sWU + 3, 1024 * jj))
    a("s_and_b32 s56, s50, 1")
    a("s_lshr_b32 s57, s50, 1")
    a("v_and_b32 v3, 31, v1")
    a("s_lshl_b32 s58, s56, 6")
    a("v_add_u32 v3, s58, v3")
    a("v_lshlrev_b32 v3, 7, v3")
    a("v_lshrrev_b32 v4, 5, v1")
    a("v_bfe_u32 v5, v1, 1, 3")
    a("v_xor_b32 v4, v4, v5")
    for s in range(4):
        a("v_xor_b32 v6, %d, v4" % (2 * s))
        a("v_lshl_add_u32 v%d, v6, 4, v3" % (vXa[0] + s))
        a("v_add_u32 v%d, %d, v%d" % (vXa[1] + s, 2 * STG, vXa[0] + s))
    a("v_bfe_u32 v3, v1, 4, 1")
    a("v_lshrrev_b32 v4, 5, v1")
    a("v_bfe_u32 v5, v1, 2, 2")
    a("v_lshl_add_u32 v4, v4, 3, v5")
    a("v_mul_u32_u24 v4, 192, v4")
    a("v_and_b32 v5, 3, v1")
    a("v_lshl_add_u32 v4, v5, 3, v4")
    a("v_mul_u32_u24 v5, 12288, v3")
    a("v_add_u32 v4, v4, v5")
    a("v_add_u32 v4, 16384, v4")
    a("s_mul_i32 s58, s57, 3")
    for fbk in range(3):
        a("s_add_u32 s59, s58, %d" % fbk)
        a("v_xor_b32 v5, s59, v3")
        a("v_lshl_add_u32 v%d, v5, 5, v4" % (vWa[0] + fbk))
        a("v_add_u32 v%d, %d, v%d" % (vWa[1] + fbk, 2 * STG, vWa[0] + fbk))
    a("s_waitcnt lgkmcnt(0)")
    srd(a, sH, 16, H_BYTES)
    srd(a, sDBG, 14, 256)
    a("s_lshl_b32 s58, s48, 2")
    a("s_lshl_b32 s59, s56, 1")
    a("s_add_u32 s58, s58, s59")
    a("s_mul_i32 s58, s58, 86")
    a("s_mul_i32 s59, s49, 6")
    a("s_mul_i32 s60, s57, 3")
    a("s_add_u32 s59, s59, s60")
    a("s_add_u32 s58, s58, s59")
    a("s_lshl_b32 s58, s58, 10")
    a("v_lshlrev_b32 v3, 4, v1")
    a("v_add_u32 v3, s58, v3")
    a("v_add_u32 v4, %d, v3" % (86 * 1024))
    for fbk in range(3):
        a("s_add_u32 s60, s59, %d" % fbk)
        a("s_cmp_ge_u32 s60, 86")
        a("s_cselect_b32 s%d, 0x40000000, %d" % (53 + fbk, 1024 * fbk))
    a("s_mov_b32 s61, 0xbfb8aa3b")

    def rd_x(st, s, fs, mbk):
        b = st % 4
        return lambda: a.lds("ds_read_b128 %s, v%d offset:%d" % (vr(FR[fs] + 4 * mbk, 4), vXa[b // 2] + s, (b % 2) * STG + 4096 * mbk), ("f", st, s, "x", mbk))

    def rd_w(st, s, fs, fbk, half):
        b = st % 4
        return lambda: a.lds("ds_read_b64_tr_b16 %s, v%d offset:%d" % (vr(FR[fs] + 8 + 4 * fbk + 2 * half, 2), vWa[b // 2] + fbk, (b % 2) * STG + 3072 * s + 768 * half), ("f", st, s, "w", fbk))

    def reads(st, s, fs):
        x = lambda m: rd_x(st, s, fs, m)
        w = lambda f, h: rd_w(st, s, fs, f, h)
        return [x(0), w(0, 0), w(0, 1), x(1), w(1, 0), w(1, 1), w(2, 0), w(2, 1)]

    def mfma(st, s, fs, fbk, mbk):
        f = FR[fs]
        tag = ("f", st, s)
        a.wait(lg=[tag + ("x", mbk), tag + ("w", fbk)])
        c = vr(acc(mbk, fbk), 16)
        if "fake16" in OPTS and st < NST - 1:
            for q in range(2):
                c = vr(acc(mbk, fbk) + 4 * q + 8 * (s & 1), 4)
                a("v_mfma_f32_16x16x32_bf16 %s, %s, %s, %s" % (c, vr(f + 8 + 4 * fbk, 4), vr(f + 4 * mbk, 4), "0" if (st == 0 and s < 2) else c))
                if q == 0 and mid:
                    mid.pop(0)()
            return
        a("v_mfma_f32_32x32x16_bf16 %s, %s, %s, %s" % (c, vr(f + 8 + 4 * fbk, 4), vr(f + 4 * mbk, 4), "0" if (st == 0 and s == 0) else c))

    mid = []

    def epi(fbk, mbk, t):
        c = acc(mbk, fbk)
        l = []
        for j in range(8):
            l.append(lambda j=j: a("v_mul_f32 v%d, s61, v%d" % (t + j, c + j)))
        for j in range(8):
            l.append(lambda j=j: a("v_exp_f32 v%d, v%d" % (t + j, t + j)))
        for j in range(8):
            l.append(lambda j=j: a("v_mul_f32 v%d, v%d, v%d" % (c + j, c + j, c + 8 + j)))
        for j in range(8):
            l.append(lambda j=j: a("v_add_f32 v%d, 1.0, v%d" % (t + j, t + j)))
        for j in range(8):
            l.append(lambda j=j: a("v_rcp_f32 v%d, v%d" % (t + j, t + j)))
        l.append(lambda: a("s_nop 0"))
        for j in range(8):
            l.append(lambda j=j: a("v_mul_f32 v%d, v%d, v%d" % (t + j, t + j, c + j)))
        for j in range(4):
            l.append(lambda j=j: a("v_cvt_pk_bf16_f32 v%d, v%d, v%d" % (t + 8 + j, t + 2 * j, t + 2 * j + 1)))
        l.append(lambda: a("buffer_store_dwordx4 %s, v%d, s[%d:%d], s%d offen%s" % (vr(t + 8, 4), 3 + mbk, sH, sH + 3, 53 + fbk, HST)))
        return l

    def epi_pk(fbk, mbk, t):
        c = acc(mbk, fbk)
        l = []
        for j in range(0, 8, 2):
            l.append(lambda j=j: a("v_pk_mul_f32 %s, %s, v[244:245]" % (vr(t + j, 2), vr(c + j, 2))))
        for j in range(8):
            l.append(lambda j=j: a("v_exp_f32 v%d, v%d" % (t + j, t + j)))
        for j in range(0, 8, 2):
            l.append(lambda j=j: a("v_pk_mul_f32 %s, %s, %s" % (vr(c + j, 2), vr(c + j, 2), vr(c + 8 + j, 2))))
        for j in range(0, 8, 2):
            l.append(lambda j=j: a("v_pk_add_f32 %s, %s, 1.0 op_sel_hi:[1,0]" % (vr(t + j, 2), vr(t + j, 2))))
        for j in range(8):
            l.append(lambda j=j: a("v_rcp_f32 v%d, v%d" % (t + j, t + j)))
        l.append(lambda: a("s_nop 0"))
        for j in range(0, 8, 2):
            l.append(lambda j=j: a("v_pk_mul_f32 %s, %s, %s" % (vr(t + j, 2), vr(t + j, 2), vr(c + j, 2))))
        for j in range(4):
            l.append(lambda j=j: a("v_cvt_pk_bf16_f32 v%d, v%d, v%d" % (t + 8 + j, t + 2 * j, t + 2 * j + 1)))
        l.append(lambda: a("buffer_store_dwordx4 %s, v%d, s[%d:%d], s%d offen%s" % (vr(t + 8, 4), 3 + mbk, sH, sH + 3, 53 + fbk, HST)))
        return l

    a("v_mov_b32 v244, s61")
    a("v_mov_b32 v245, s61")
    order = [(0, 0), (0, 1), (1, 0), (1, 1), (2, 0), (2, 1)]
    stamp(a, 1)
    a("s_barrier")
    stamp(a, 2)
    stamp(a, 10, True)
    for r in reads(0, 0, 0):
        r()
    fs = 0
    for st in range(NST - 1):
        if st == 4:
            a("s_cmp_lg_u32 s50, 0")
            a("s_cbranch_scc1 C_nn2")
            a("buffer_load_dwordx2 v[246:247], v248, s[%d:%d], 0 offen sc1" % (sDBG, sDBG + 3))
            a.label("C_nn2")
        for s in range(4):
            if s < 3:
                rd = reads(st, s + 1, fs ^ 1)
                sched = {0: rd[0:3], 1: rd[3:6], 2: rd[6:8]}
                if "fake16" in OPTS:
                    sched = {i: [rd[2 * i + 1]] for i in range(4)}
                    mid[:] = [rd[2 * i] for i in range(4)]
                for i, (fbk, mbk) in enumerate(order):
                    mfma(st, s, fs, fbk, mbk)
                    for r in sched.get(i, []):
                        r()
            else:
                rd = reads(st + 1, 0, fs ^ 1)
                for i, (fbk, mbk) in enumerate(order):
                    mfma(st, s, fs, fbk, mbk)
                    if i == 1:
                        a.wait(lg_all=True)
                        if "cdma" in OPTS and st in (1, 2):
                            a("s_waitcnt vmcnt(%d)" % (10 if st == 1 else 0))
                        if "bw" in OPTS:
                            a("s_memtime s[88:89]")
                            a("s_waitcnt lgkmcnt(0)")
                        a("s_barrier")
                        if "bw" in OPTS:
                            a("s_memtime s[90:91]")
                            a("s_waitcnt lgkmcnt(0)")
                            a("s_sub_u32 s88, s90, s88")
                            if st == 0:
                                a("s_mov_b32 s101, 0")
                                a("s_mov_b32 s3, 0")
                            if st < 4:
                                a("s_add_u32 s101, s101, s88")
                            else:
                                a("s_add_u32 s3, s3, s88")
                        for r in rd[0:3]:
                            r()
                    if i == 2:
                        for r in rd[3:6]:
                            r()
                    if i == 3:
                        for r in rd[6:8]:
                            r()
                    if st == NST - 2 and i >= 4:
                        sets = [fs ^ 1, fs, 2, 3]
                        ss = i - 3
                        if ss == 2:
                            rd_x(NST - 1, 2, sets[2], 0)(); rd_w(NST - 1, 2, sets[2], 0, 0)(); rd_w(NST - 1, 2, sets[2], 0, 1)()
                            rd_x(NST - 1, 3, sets[3], 0)(); rd_w(NST - 1, 3, sets[3], 0, 0)(); rd_w(NST - 1, 3, sets[3], 0, 1)()
            fs ^= 1
    st = NST - 1
    sets = [fs, fs ^ 1, 2, 3]
    pend = [rd_x(st, 1, sets[1], 0), rd_w(st, 1, sets[1], 0, 0), rd_w(st, 1, sets[1], 0, 1)]
    pend += [rd_x(st, s, sets[s], 1) for s in (1, 2, 3)]
    for f_ in (1, 2):
        for s in (1, 2, 3):
            pend += [rd_w(st, s, sets[s], f_, 0), rd_w(st, s, sets[s], f_, 1)]
    TMP = [8, 20]
    a("s_waitcnt vmcnt(0)")

    def tile_mfmas(ti):
        fbk, mbk = order[ti]
        return [(lambda s=s: mfma(st, s, sets[s], fbk, mbk)) for s in ([0, 2, 3, 1] if ti == 0 else range(4))]

    for ti in (0, 1):
        for m in tile_mfmas(ti):
            m()
            for _ in range(3):
                if pend:
                    pend.pop(0)()
    assert not pend
    a.wait(lg_all=True)
    a("s_barrier")
    for ti in range(6):
        fbk, mbk = order[ti]
        if ti + 2 < 6:
            ev = epi(fbk, mbk, TMP[ti % 2])
            ms = tile_mfmas(ti + 2)
            step = len(ev) // 4
            for k, th in enumerate(ev):
                if k % step == 0 and ms:
                    ms.pop(0)()
                th()
            assert not ms
            if ti + 2 == 5:
                stamp(a, 3)
                stamp(a, 11, True)
        else:
            for th in epi_pk(fbk, mbk, TMP[ti % 2]):
                th()
    stamp(a, 4)
    a("s_barrier")
    a("s_waitcnt vmcnt(0)")
    stamp(a, 8)
    a("s_barrier")
    stamp(a, 9)
    a("s_cmp_lg_u32 s50, 0")
    a("s_cbranch_scc1 C_p2b")
    getnonce(a, "a")
    a("s_lshl_b32 s58, s48, 8")
    a("s_lshl_b32 s59, s49, 3")
    a("s_add_u32 s58, s58, s59")
    a("s_add_u32 s58, s58, %d" % FLAG_OFF)
    a("v_mov_b32 v3, s58")
    a("s_mov_b64 exec, 1")
    a("buffer_store_dwordx2 v[246:247], v3, s[%d:%d], 0 offen sc1" % (sH, sH + 3))
    a("s_mov_b64 exec, -1")
    a("s_branch C_p2b")
    a.label("C_p2")
    a("s_waitcnt vmcnt(0) lgkmcnt(0)")
    srd(a, sH, 16, H_BYTES)
    a("s_barrier")
    a("s_cmp_lg_u32 s50, 0")
    a("s_cbranch_scc1 C_p2b")
    a("v_mov_b32 v246, 0")
    a("v_mov_b32 v247, 0")
    getnonce(a, "b")
    a.label("C_p2b")
    p2_setup(a)
    a("s_barrier")
    a("s_cmp_lg_u32 s50, 0")
    a("s_cbranch_scc1 P2_main")
    poll(a)
    a("s_branch P2_main")

    a.label("L_loader")
    a.vm = []
    a.lg = []
    vXo, vWgo, vWuo, vWd = 8, 12, 15, 18
    a("s_sub_u32 s56, s50, 4")
    a("v_lshrrev_b32 v3, 3, v1")
    a("v_and_b32 v4, 7, v1")
    a("v_lshrrev_b32 v5, 4, v1")
    a("s_lshl_b32 s58, s48, 7")
    a("s_lshl_b32 s59, s56, 5")
    a("s_add_u32 s58, s58, s59")
    a("v_add_u32 v6, s58, v3")
    a("v_lshlrev_b32 v6, 10, v6")
    for jj in range(4):
        a("v_add_u32 v7, %d, v5" % (4 * jj))
        a("v_and_b32 v7, 7, v7")
        a("v_xor_b32 v7, v7, v4")
        a("v_lshl_add_u32 v%d, v7, 4, v6" % (vXo + jj))
        if jj:
            a("v_add_u32 v%d, %d, v%d" % (vXo + jj, jj * (8192 - 1024), vXo + jj))
    a("s_mul_i32 s58, s56, 192")
    a("s_mul_i32 s59, s49, 192")
    a("s_mov_b32 s60, 43691")
    a("s_mov_b32 s61, 2752")
    for jj in range(3):
        a("v_add_u32 v6, s58, v1")
        if jj:
            a("v_add_u32 v6, %d, v6" % (64 * jj))
        a("v_mul_lo_u32 v7, v6, s60")
        a("v_lshrrev_b32 v7, 19, v7")
        a("v_mul_u32_u24 v19, 12, v7")
        a("v_sub_u32 v19, v6, v19")
        a("v_mul_lo_u32 v7, v7, s61")
        a("v_add_u32 v7, s59, v7")
        if jj:
            a("v_subrev_u32 v7, %d, v7" % (1024 * jj))
        a("v_lshl_add_u32 v%d, v19, 4, v7" % (vWgo + jj))
        a("v_xor_b32 v19, 2, v19")
        a("v_lshl_add_u32 v%d, v19, 4, v7" % (vWuo + jj))
    a("s_lshl_b32 s58, s56, 3")
    a("v_add_u32 v6, s58, v3")
    a("v_lshlrev_b32 v6, 10, v6")
    a("s_lshl_b32 s58, s52, 7")
    a("v_add_u32 v6, s58, v6")
    a("v_bfe_u32 v7, v1, 4, 1")
    a("v_lshlrev_b32 v7, 2, v7")
    a("v_xor_b32 v7, v7, v4")
    a("v_lshl_add_u32 v%d, v7, 4, v6" % vWd)
    a("s_lshl_b32 s57, s56, 12")
    a("s_mul_i32 s58, s56, 3072")
    a("s_add_u32 s58, s58, 16384")
    a("s_add_u32 s59, s58, 12288")
    if "rot" in OPTS:
        a("s_lshl_b32 s55, s49, 1")
        a("s_add_u32 s55, s55, s48")
        a("s_and_b32 s55, s55, 7")
    else:
        a("s_mov_b32 s55, 0")
    a("s_lshl_b32 s60, s55, 7")
    a("s_mul_i32 s61, s55, %d" % (64 * 2752))
    a("s_lshl_b32 s18, s56, 10")
    a("s_waitcnt lgkmcnt(0)")
    srd(a, sX, 4, X_BYTES)
    srd(a, sWG, 6, W_BYTES)
    srd(a, sWU, 8, W_BYTES)
    srd(a, sWD, 10, W_BYTES)
    srd(a, sH, 16, H_BYTES)

    def dma(st):
        if "nodma" in OPTS and st > 3:
            return
        b = (st % 4) * STG
        a("s_add_u32 m0, s57, %d" % b)
        a("s_nop 0")
        for jj in range(4):
            a.vmem("buffer_load_dwordx4 v%d, s[%d:%d], s60 offen offset:%d lds" % (vXo + jj, sX, sX + 3, 1024 * jj), ("d", st))
        a("s_add_u32 m0, s58, %d" % b)
        a("s_nop 0")
        for jj in range(3):
            a.vmem("buffer_load_dwordx4 v%d, s[%d:%d], s61 offen offset:%d lds" % (vWgo + jj, sWG, sWG + 3, 1024 * jj), ("d", st))
        a("s_add_u32 m0, s59, %d" % b)
        a("s_nop 0")
        for jj in range(3):
            a.vmem("buffer_load_dwordx4 v%d, s[%d:%d], s61 offen offset:%d lds" % (vWuo + jj, sWU, sWU + 3, 1024 * jj), ("d", st))
        a("s_add_u32 s55, s55, 1")
        a("s_and_b32 s55, s55, 7")
        a("s_lshl_b32 s60, s55, 7")
        a("s_mul_i32 s61, s55, %d" % (64 * 2752))

    def wd1(reg, t, slot):
        a("s_add_u32 m0, s18, %d" % (reg * STG + slot * 4096))
        a("s_mov_b32 s19, %d" % ((352 * reg + 32 * t) * 1024))
        a.vmem("buffer_load_dwordx4 v%d, s[%d:%d], s19 offen lds" % (vWd, sWD, sWD + 3), ("p", reg, t))

    def l2warm():
        a("s_lshr_b32 s19, s2, 3")
        a("s_lshl_b32 s19, s19, 2")
        a("s_add_u32 s19, s19, s56")
        a("v_lshlrev_b32 v20, 4, v1")
        a("s_mul_i32 s3, s19, 3")
        a("s_add_u32 s3, s3, 1056")
        a("s_lshl_b32 s3, s3, 10")
        for i in range(3):
            a.vmem("buffer_load_dwordx4 v[%d:%d], v20, s[%d:%d], s3 offen offset:%d" % (28 + 4 * i, 31 + 4 * i, sWD, sWD + 3, 1024 * i), "j")
        a("s_lshr_b32 s3, s19, 5")
        a("s_mul_i32 s3, s3, 352")
        a("s_and_b32 s19, s19, 31")
        a("s_add_u32 s3, s3, s19")
        a("s_lshl_b32 s3, s3, 10")
        a.vmem("buffer_load_dwordx4 v[40:43], v20, s[%d:%d], s3 offen" % (sWD, sWD + 3), "j")

    NPRE = 3
    for o in OPTS:
        if o.startswith("pre"):
            NPRE = int(o[3:])
    SUN = 10
    for o in OPTS:
        if o.startswith("sun"):
            SUN = int(o[3:])

    def wdreg(reg):
        wd1(reg, 10, 0)
        for t in range(1, 10):
            wd1(reg, t, t)

    rest = [(r, 10) for r in range(NPRE, 3)]
    for t in list(range(1, 10)) + [0]:
        for r in range(NPRE, 4):
            if t == 0 and r < 3:
                continue
            rest.append((r, t))

    def issue(lst):
        for r, t in lst:
            wd1(r, t, 0 if t == 10 else t)

    if "wfirst" in OPTS:
        a("s_barrier")
    a("s_cmp_ge_u32 s49, 15")
    a("s_cbranch_scc1 LD_nop1")
    stamp(a, 1)
    dma(0)
    dma(1)
    a.wait(vm=[("d", 0)])
    a("s_barrier")
    stamp(a, 2)
    if "cdma" in OPTS:
        a("s_add_u32 s55, s55, 2")
        a("s_lshl_b32 s60, s55, 7")
        a("s_mul_i32 s61, s55, %d" % (64 * 2752))
    else:
        dma(2)
        dma(3)
    for st in range(NST - 1):
        a.wait(vm=[("d", st + 1)])
        a("s_barrier")
        if st + 4 < NST:
            dma(st + 4)
            if st == 1:
                a("s_lshl_b32 s19, s2, 2")
                a("s_add_u32 s19, s19, s56")
                a("s_mul_i32 s3, s19, 1376")
                a("v_lshlrev_b32 v20, 4, v1")
                a("s_mov_b32 s19, 352")
                a("v_cmp_gt_u32 vcc, s19, v20")
                a.vmem("buffer_load_dwordx4 v[28:31], v20, s[%d:%d], s3 offen" % (sWD, sWD + 3), "j")
                a("s_and_saveexec_b64 s[62:63], vcc")
                a.vmem("buffer_load_dwordx4 v[32:35], v20, s[%d:%d], s3 offen offset:1024" % (sWD, sWD + 3), "j")
                a("s_mov_b64 exec, s[62:63]")
        elif st - 4 < NPRE:
            wdreg(st - 4)
    a("s_barrier")
    stamp(a, 3)
    a("s_barrier")
    issue(rest[:SUN])
    a.wait(vm=[("p", r, 10) for r in range(3)])
    a("s_branch LD_e")
    a.label("LD_nop1")
    a.vm = []
    for reg in range(NPRE):
        wdreg(reg)
    issue(rest[:SUN])
    a.wait(vm=[("p", r, 10) for r in range(3)])
    a.label("LD_e")
    a("s_barrier")
    stamp(a, 4)
    a.vm = ["old"] * 20
    issue(rest[SUN:])
    a.vm.append("last")
    a.lines.append("    ; marker")
    p2_setup(a)
    a("s_barrier")
    for reg in range(3):
        a("s_add_u32 m0, s18, %d" % (reg * STG))
        a("s_mov_b32 s19, %d" % (352 * reg * 1024))
        a.vmem("buffer_load_dwordx4 v%d, s[%d:%d], s19 offen lds" % (vWd, sWD, sWD + 3), "p0")
    a.wait(vm=["last"])
    stamp(a, 8)
    p2_main(a, a.vm)
    a.label("L_end")
    a("s_endpgm")
    return a.text()


HEADER = """; Kernarg layout for this problem (56 bytes, ptrs only, base s[0:1]):
; @launch grid=(256,1,1) block=(512,1,1) lds=163840
.amdgcn_target "amdgcn-amd-amdhsa--gfx950"
.text
.globl standalone__swiglu_ffn__prompt_kernel
.p2align 8
.type standalone__swiglu_ffn__prompt_kernel,@function
"""

KD = """.section .rodata,"a"
.p2align 6
.amdhsa_kernel standalone__swiglu_ffn__prompt_kernel
  .amdhsa_next_free_vgpr 256
  .amdhsa_next_free_sgpr 102
  .amdhsa_accum_offset 256
  .amdhsa_group_segment_fixed_size 0
  .amdhsa_kernarg_size 56
  .amdhsa_user_sgpr_count 2
  .amdhsa_user_sgpr_kernarg_segment_ptr 1
  .amdhsa_system_sgpr_workgroup_id_x 1
.end_amdhsa_kernel
"""


def main():
    out = HEADER + gen() + KD
    path = sys.argv[1] if len(sys.argv) > 1 else "standalone__swiglu_ffn__prompt.s"
    open(path, "w").write(out)


main()
```

```python
import sys

M, D, F = 2048, 512, 1376
KB16 = F // 16
H_BYTES = 0x1000000
FLAG_OFF = 0x800000
X_BYTES = M * D * 2
W_BYTES = D * F * 2
OUT_BYTES = M * D * 2

OPTS = set(sys.argv[2:])
TS = "ts" in OPTS
HLD = " sc1"
HST = " sc1"


class Asm:
    def __init__(self):
        self.lines = []
        self.vm = []
        self.lg = []

    def __call__(self, s):
        self.lines.append("    " + s)

    def label(self, l):
        self.lines.append(l + ":")

    def vmem(self, s, tag):
        self(s)
        self.vm.append(tag)
        assert len(self.vm) <= 63, "too many vmem outstanding"

    def lds(self, s, tag):
        self(s)
        self.lg.append(tag)

    def _need(self, q, tags):
        idx = -1
        for i, t in enumerate(q):
            if t in tags:
                idx = i
        if idx < 0:
            return None
        return len(q) - 1 - idx

    def wait(self, vm=(), lg=(), vm_all=False, lg_all=False):
        parts = []
        if vm_all:
            parts.append("vmcnt(0)")
            self.vm = []
        else:
            n = self._need(self.vm, set(vm))
            if n is not None:
                parts.append("vmcnt(%d)" % n)
                self.vm = self.vm[len(self.vm) - n:] if n else []
        if lg_all:
            if self.lg:
                parts.append("lgkmcnt(0)")
                self.lg = []
        else:
            n = self._need(self.lg, set(lg))
            if n is not None:
                n = min(n, 15)
                parts.append("lgkmcnt(%d)" % n)
                self.lg = self.lg[len(self.lg) - n:] if n else []
        if parts:
            self("s_waitcnt " + " ".join(parts))

    def text(self):
        return "\n".join(self.lines) + "\n"


def vr(a, n):
    return "v[%d:%d]" % (a, a + n - 1)


def srd(a, dst, src, sz):
    a("s_mov_b32 s%d, s%d" % (dst, src))
    a("s_and_b32 s%d, s%d, 0xffff" % (dst + 1, src + 1))
    a("s_mov_b32 s%d, %d" % (dst + 2, sz))
    a("s_mov_b32 s%d, 0x00020000" % (dst + 3))


def stamp(a, i, cyc=False):
    if not TS:
        return
    a("%s s[%d:%d]" % ("s_memtime" if cyc else "s_memrealtime", 64 + 2 * i, 65 + 2 * i))
    a("s_waitcnt lgkmcnt(0)")
    a.lg = []


def stamp_store(a, kidx, wave, endlabel):
    a("s_memrealtime s[78:79]")
    a("s_memtime s[94:95]")
    a("s_waitcnt lgkmcnt(0)")
    a("s_cmp_lg_u32 s50, %d" % wave)
    a("s_cbranch_scc1 %s" % endlabel)
    a("s_mov_b64 exec, -1")
    if "dbgts" in OPTS:
        if kidx == 1:
            a("s_branch %s" % endlabel)
            return
        srd(a, sDBG, 14, 256)
        a("s_mov_b32 s100, 8")
        a("s_cmp_eq_u32 s2, 0")
        a("s_cbranch_scc1 TS_d")
        a("s_mov_b32 s100, 36")
        a("s_cmp_eq_u32 s2, 200")
        a("s_cbranch_scc0 %s" % endlabel)
        a.label("TS_d")
        a("v_mov_b32 v2, 0")
        for n, i in enumerate([0, 2, 3, 4, 9, 5, 7]):
            a("v_mov_b32 v4, s%d" % (64 + 2 * i))
            a("buffer_store_dword v4, v2, s[%d:%d], s100 offen offset:%d" % (sDBG, sDBG + 3, 4 * n))
            a("s_nop 2")
        return
    a("s_mov_b32 s96, s16")
    a("s_and_b32 s97, s17, 0xffff")
    a("s_mov_b32 s98, 0x2000000")
    a("s_mov_b32 s99, 0x00020000")
    a("s_lshl_b32 s100, s2, 7")
    a("s_add_u32 s100, s100, %d" % ((16 << 20) + kidx * 256 * 128))
    a("v_mov_b32 v2, 0")
    for i in range(16):
        a("v_mov_b32 v4, s%d" % (64 + 2 * i))
        a("v_mov_b32 v5, s%d" % (65 + 2 * i))
        a("buffer_store_dwordx2 v[4:5], v2, s[96:99], s100 offen offset:%d" % (8 * i))
        a("s_nop 2")


STG = 40960
NST = 8
sX, sWG, sWU, sWD, sOUT, sH, sDBG = 20, 24, 28, 32, 36, 40, 44

NIT = 11
PDH = 6 if "pdh6" in OPTS else 4
ACC2 = 224
W10 = 208
WF = [176, 192]
HR = 88
vH, vA = 24, 26


def p2_setup(a):
    srd(a, sOUT, 12, OUT_BYTES)
    a("s_and_b32 s56, s50, 3")
    a("s_lshr_b32 s57, s50, 2")
    a("s_lshl_b32 s58, s51, 1")
    a("s_add_u32 s59, s58, s57")
    a("s_mul_i32 s59, s59, 86")
    a("s_mul_i32 s61, s56, 22")
    a("s_add_u32 s59, s59, s61")
    a("s_lshl_b32 s59, s59, 10")
    a("v_lshlrev_b32 v3, 4, v1")
    a("v_add_u32 v%d, s59, v3" % vH)
    a("s_mul_i32 s62, s56, %d" % STG)
    a("s_cmp_eq_u32 s56, 3")
    a("s_cselect_b32 s63, 0, %d" % (10 * 2048))
    a("s_and_b32 s58, s56, 1")
    a("s_lshr_b32 s59, s56, 1")
    a("v_lshrrev_b32 v3, 5, v1")
    a("v_bfe_u32 v4, v1, 2, 2")
    a("v_lshl_add_u32 v3, v3, 2, v4")
    a("v_lshlrev_b32 v3, 7, v3")
    a("v_bfe_u32 v4, v1, 3, 1")
    a("v_xor_b32 v4, s58, v4")
    a("v_lshl_add_u32 v3, v4, 6, v3")
    a("v_bfe_u32 v4, v1, 4, 1")
    a("v_xor_b32 v4, s59, v4")
    a("v_lshl_add_u32 v3, v4, 5, v3")
    a("v_and_b32 v4, 3, v1")
    a("v_lshl_add_u32 v3, v4, 3, v3")
    a("v_add_u32 v%d, s62, v3" % vA)
    a("v_xor_b32 v%d, 64, v%d" % (vA + 1, vA))
    for ks in range(2):
        for da in range(2):
            for half in range(2):
                a("ds_read_b64_tr_b16 %s, v%d offset:%d" % (vr(W10 + (ks * 2 + da) * 4 + 2 * half, 2), vA + da, ks * 2048 + half * 1024))
    a("s_waitcnt lgkmcnt(0)")
    a.lg = []
    P2S[0] += 1
    a("s_cmp_lg_u32 s56, 3")
    a("s_cbranch_scc1 P2S_%d" % P2S[0])
    for j in range(16):
        a("v_mov_b32 v%d, 0" % (W10 + j))
    a.label("P2S_%d" % P2S[0])


P2S = [0]


def p2_main(a, pre_vm):
    a.label("P2_main")
    a.vm = list(pre_vm)
    a.lg = []
    a("s_barrier")
    stamp(a, 5)
    def hloads(i):
        if i == 0:
            so = "s63"
        elif i == NIT - 1:
            so = "0"
        else:
            a("s_mov_b32 s58, %d" % (i * 2048))
            so = "s58"
        for ks in range(2):
            a.vmem("buffer_load_dwordx4 %s, v%d, s[%d:%d], %s offen offset:%d%s" % (
                vr(HR + i * 8 + ks * 4, 4), vH, sH, sH + 3, so, 1024 * ks, HLD), ("h", i))

    def trreads(i, f):
        t = 0 if i == NIT - 1 else i
        l = []
        for ks in range(2):
            for da in range(2):
                for half in range(2):
                    l.append((lambda ks=ks, da=da, half=half: a.lds("ds_read_b64_tr_b16 %s, v%d offset:%d" % (
                        vr(f + (ks * 2 + da) * 4 + 2 * half, 2), vA + da, t * 4096 + ks * 2048 + half * 1024), ("t", i, ks, da))))
        return l

    for i in range(PDH):
        hloads(i)
    for i in range(NIT):
        f = W10 if i == 0 else WF[i % 2]
        rd = []
        if i + 1 < NIT:
            rd = trreads(i + 1, WF[(i + 1) % 2])
        a.wait(vm=[("h", i)])
        n = 0
        for ks in range(2):
            for da in range(2):
                a.wait(lg=[("t", i, ks, da)])
                c = vr(ACC2 + da * 16, 16)
                a("v_mfma_f32_32x32x16_bf16 %s, %s, %s, %s" % (c, vr(f + (ks * 2 + da) * 4, 4), vr(HR + i * 8 + ks * 4, 4),
                                                               "0" if (i == 0 and ks == 0) else c))
                if rd:
                    rd[2 * n]()
                    rd[2 * n + 1]()
                n += 1
            if ks == 0 and i + PDH < NIT:
                hloads(i + PDH)
        if i == NIT - 4:
            a.wait(vm=["p0"])
            a("s_barrier")
    stamp(a, 6)
    a("v_lshlrev_b32 v3, 4, v1")
    a("s_mul_i32 s58, s57, 6144")
    a("s_add_u32 s58, s58, 4096")
    a("v_add_u32 v3, s58, v3")
    a("v_add_u32 v4, s62, v3")
    for x in range(1, 4):
        a("s_xor_b32 s58, s56, %d" % x)
        a("s_mul_i32 s58, s58, %d" % STG)
        a("v_add_u32 v%d, s58, v3" % (4 + x))
    a("s_nop 7")
    for p in range(1, 4):
        c = ACC2 + (p & 1) * 16 + (p >> 1) * 8
        for j in range(2):
            a.lds("ds_write_b128 v4, %s offset:%d" % (vr(c + 4 * j, 4), (p - 1) * 2048 + j * 1024), "r")
    a.wait(lg_all=True)
    a("s_barrier")
    for x in range(1, 4):
        for j in range(2):
            a.lds("ds_read_b128 %s, v%d offset:%d" % (vr(64 + (x - 1) * 8 + 4 * j, 4), 4 + x, (x - 1) * 2048 + j * 1024), ("q", x))
    a("s_lshl_b32 s58, s51, 6")
    a("s_lshl_b32 s59, s57, 5")
    a("s_add_u32 s58, s58, s59")
    a("v_and_b32 v3, 31, v1")
    a("v_add_u32 v3, s58, v3")
    a("v_lshlrev_b32 v3, 10, v3")
    a("s_lshl_b32 s58, s52, 7")
    a("s_and_b32 s59, s56, 1")
    a("s_lshl_b32 s59, s59, 6")
    a("s_add_u32 s58, s58, s59")
    a("s_lshr_b32 s59, s56, 1")
    a("s_lshl_b32 s59, s59, 5")
    a("s_add_u32 s58, s58, s59")
    a("v_add_u32 v3, s58, v3")
    a("v_lshrrev_b32 v8, 5, v1")
    a("v_lshl_add_u32 v3, v8, 4, v3")
    for x in range(1, 4):
        a.wait(lg=[("q", x)])
        for j in range(8):
            a("v_add_f32 v%d, v%d, v%d" % (ACC2 + j, ACC2 + j, 64 + (x - 1) * 8 + j))
    for j in range(4):
        a("v_cvt_pk_bf16_f32 v%d, v%d, v%d" % (32 + j, ACC2 + 2 * j, ACC2 + 2 * j + 1))
    a("s_nop 1")
    a("v_permlane32_swap_b32 v32, v34")
    a("v_permlane32_swap_b32 v33, v35")
    a("buffer_store_dwordx4 v[32:35], v3, s[%d:%d], 0 offen%s" % (sOUT, sOUT + 3, " sc1" if "osc1" in OPTS else (" nt" if "ont" in OPTS else "")))
    for o in OPTS:
        if o.startswith("spin"):
            a("s_memrealtime s[56:57]")
            a("s_waitcnt lgkmcnt(0)")
            a("s_add_u32 s58, s56, %d" % int(o[4:]))
            a.label("SPIN")
            a("s_memrealtime s[56:57]")
            a("s_waitcnt lgkmcnt(0)")
            a("s_sub_u32 s59, s58, s56")
            a("s_cmp_gt_i32 s59, 0")
            a("s_cbranch_scc1 SPIN")
    if TS:
        a("s_waitcnt vmcnt(0)")
        a("s_cmp_eq_u32 s50, 4")
        a("s_cbranch_scc1 TS_l")
        stamp_store(a, 0, 0, "L_end")
        a("s_endpgm")
        a.label("TS_l")
        stamp_store(a, 1, 4, "L_end")


def getnonce(a, tag):
    a("s_mov_b32 s59, 0")
    a.label("C_gn" + tag)
    a("v_readfirstlane_b32 s60, v246")
    a("s_nop 3")
    a("s_cmp_lg_u32 s60, 0")
    a("s_cbranch_scc1 C_gnd" + tag)
    a("s_add_u32 s59, s59, 1")
    a("s_cmp_ge_u32 s59, 0x400000")
    a("s_cbranch_scc1 C_gnd" + tag)
    a("s_sleep 8")
    a("buffer_load_dwordx2 v[246:247], v248, s[%d:%d], 0 offen sc1" % (sDBG, sDBG + 3))
    a("s_waitcnt vmcnt(0)")
    a("s_branch C_gn" + tag)
    a.label("C_gnd" + tag)


def poll(a):
    a("s_lshr_b32 s58, s51, 1")
    a("s_lshl_b32 s58, s58, 8")
    a("s_add_u32 s58, s58, %d" % FLAG_OFF)
    a("v_lshlrev_b32 v3, 3, v1")
    a("v_add_u32 v3, s58, v3")
    a("s_mov_b32 s59, 0")
    a("s_mov_b64 exec, 0x7fff")
    NP = 2
    for k in range(NP - 1):
        a("buffer_load_dwordx2 v[%d:%d], v3, s[%d:%d], 0 offen sc1" % (32 + 2 * k, 33 + 2 * k, sH, sH + 3))
        a("s_sleep 3")
    a.label("C_poll")
    for k in range(NP):
        kk = (k + NP - 1) % NP
        a("buffer_load_dwordx2 v[%d:%d], v3, s[%d:%d], 0 offen sc1" % (32 + 2 * kk, 33 + 2 * kk, sH, sH + 3))
        a("s_waitcnt vmcnt(%d)" % (NP - 1))
        a("v_cmp_eq_u64 vcc, v[%d:%d], v[246:247]" % (32 + 2 * k, 33 + 2 * k))
        a("s_add_u32 s59, s59, 1")
        a("s_nop 3")
        a("s_cmp_eq_u64 vcc, exec")
        a("s_cbranch_scc1 C_polled")
        a("s_sleep 3")
    a("s_cmp_ge_u32 s59, 0x400000")
    a("s_cbranch_scc0 C_poll")
    a.label("C_polled")
    a("s_waitcnt vmcnt(0)")
    a("s_mov_b64 exec, -1")


def gen():
    a = Asm()
    a.label("standalone__swiglu_ffn__prompt_kernel")
    a("s_cmp_ge_u32 s2, 256")
    a("s_cbranch_scc1 L_end")
    if "badmap" in OPTS:
        a("s_mul_i32 s2, s2, 37")
        a("s_add_u32 s2, s2, 11")
        a("s_and_b32 s2, s2, 255")
        a("s_lshr_b32 s3, s2, 3")
        a("s_xor_b32 s2, s2, s3")
    stamp(a, 0)
    if TS:
        a("s_memtime s[92:93]")
    a("s_load_dwordx8 s[4:11], s[0:1], 0")
    a("s_load_dwordx4 s[12:15], s[0:1], 32")
    a("s_load_dwordx2 s[16:17], s[0:1], 48")
    a("v_lshrrev_b32 v2, 6, v0")
    a("v_and_b32 v1, 63, v0")
    a("s_and_b32 s53, s2, 7")
    a("v_readfirstlane_b32 s50, v2")
    a("s_lshr_b32 s54, s2, 3")
    a("s_and_b32 s48, s53, 1")
    a("s_lshl_b32 s48, s48, 3")
    a("s_and_b32 s55, s54, 7")
    a("s_add_u32 s48, s48, s55")
    a("s_lshr_b32 s49, s53, 1")
    a("s_lshl_b32 s49, s49, 2")
    a("s_lshr_b32 s55, s54, 3")
    a("s_add_u32 s49, s49, s55")
    a("s_lshl_b32 s51, s53, 2")
    a("s_and_b32 s55, s54, 3")
    a("s_add_u32 s51, s51, s55")
    a("s_lshr_b32 s52, s54, 2")
    a("s_cmp_ge_u32 s50, 4")
    a("s_cbranch_scc1 L_loader")

    ACC = 128
    def acc(mbk, fbk):
        return ACC + (mbk * 3 + fbk) * 16
    FR = [32, 52, 100, 224]
    vXa = [72, 88]
    vWa = [76, 92]
    if "nowarm" not in OPTS:
        a("s_waitcnt lgkmcnt(0)")
        srd(a, sX, 4, X_BYTES)
        srd(a, sWG, 6, W_BYTES)
        srd(a, sWU, 8, W_BYTES)
        srd(a, sWD, 10, W_BYTES)
        if "v4" in OPTS:
            a("s_lshr_b32 s56, s2, 3")
            a("s_lshl_b32 s56, s56, 2")
            a("s_add_u32 s56, s56, s50")
            a("s_and_b32 s57, s2, 1")
            a("s_lshl_b32 s57, s57, 7")
            a("s_add_u32 s57, s57, s56")
            a("s_lshl_b32 s57, s57, 13")
            a("s_bfe_u32 s58, s2, 0x20001")
            a("s_mul_i32 s58, s58, 768")
            a("s_mul_i32 s59, s56, %d" % (4 * 2752))
            a("s_add_u32 s58, s58, s59")
            a("v_lshlrev_b32 v3, 4, v1")
            a("s_mov_b32 exec_hi, 0xffff")
            for r in range(4):
                if r:
                    a("s_add_u32 s58, s58, 2752")
                a("buffer_load_dwordx4 v[8:11], v3, s[%d:%d], s58 offen" % (sWG, sWG + 3))
                a("buffer_load_dwordx4 v[12:15], v3, s[%d:%d], s58 offen" % (sWU, sWU + 3))
            a("s_mov_b64 exec, -1")
            for r in range(8):
                if r == 4:
                    a("s_add_u32 s57, s57, 4096")
                a("buffer_load_dwordx4 v[%d:%d], v3, s[%d:%d], s57 offen offset:%d" % (16 + 4 * (r & 1), 19 + 4 * (r & 1), sX, sX + 3, 1024 * (r & 3)))
        else:
            a("s_lshl_b32 s56, s2, 2")
            a("s_add_u32 s56, s56, s50")
            a("s_lshl_b32 s57, s56, 11")
            a("s_mul_i32 s58, s56, 1376")
            a("v_lshlrev_b32 v3, 4, v1")
            a("s_mov_b32 s59, 352")
            a("v_cmp_gt_u32 s[60:61], s59, v3")
            a("buffer_load_dwordx4 v[8:11], v3, s[%d:%d], s57 offen" % (sX, sX + 3))
            a("buffer_load_dwordx4 v[12:15], v3, s[%d:%d], s57 offen offset:1024" % (sX, sX + 3))
            wl = (sWG, sWU)
            for k, r in enumerate(wl):
                a("buffer_load_dwordx4 v[16:19], v3, s[%d:%d], s58 offen" % (r, r + 3))
            a("s_and_saveexec_b64 s[62:63], s[60:61]")
            for k, r in enumerate(wl):
                a("buffer_load_dwordx4 v[20:23], v3, s[%d:%d], s58 offen offset:1024" % (r, r + 3))
            a("s_mov_b64 exec, s[62:63]")
        if "wfirst" in OPTS:
            a("s_waitcnt vmcnt(0)")
            a("s_barrier")
    a("s_waitcnt lgkmcnt(0)")
    srd(a, sDBG, 14, 256)
    a("s_or_b32 s56, s2, s50")
    a("s_cmp_lg_u32 s56, 0")
    a("s_cbranch_scc1 C_nononce")
    a("s_memrealtime s[56:57]")
    a("s_waitcnt lgkmcnt(0)")
    a("s_or_b32 s56, s56, 1")
    a("v_mov_b32 v4, s56")
    a("v_mov_b32 v5, s57")
    a("v_mov_b32 v6, 0")
    a("s_mov_b64 exec, 1")
    a("buffer_store_dwordx2 v[4:5], v6, s[%d:%d], 0 offen sc1" % (sDBG, sDBG + 3))
    a("s_mov_b64 exec, -1")
    a.label("C_nononce")
    a("v_mov_b32 v248, 0")
    a("s_cmp_ge_u32 s49, 15")
    a("s_cbranch_scc1 C_p2")
    if "cdma" in OPTS:
        vb = 104
        a("v_lshrrev_b32 v3, 3, v1")
        a("v_and_b32 v4, 7, v1")
        a("v_lshrrev_b32 v5, 4, v1")
        a("s_lshl_b32 s58, s48, 7")
        a("s_lshl_b32 s59, s50, 5")
        a("s_add_u32 s58, s58, s59")
        a("v_add_u32 v6, s58, v3")
        a("v_lshlrev_b32 v6, 10, v6")
        for jj in range(4):
            a("v_add_u32 v7, %d, v5" % (4 * jj))
            a("v_and_b32 v7, 7, v7")
            a("v_xor_b32 v7, v7, v4")
            a("v_lshl_add_u32 v%d, v7, 4, v6" % (vb + jj))
            if jj:
                a("v_add_u32 v%d, %d, v%d" % (vb + jj, jj * (8192 - 1024), vb + jj))
        a("s_mul_i32 s58, s50, 192")
        a("s_mul_i32 s59, s49, 192")
        a("s_mov_b32 s60, 43691")
        a("s_mov_b32 s61, 2752")
        for jj in range(3):
            a("v_add_u32 v6, s58, v1")
            if jj:
                a("v_add_u32 v6, %d, v6" % (64 * jj))
            a("v_mul_lo_u32 v7, v6, s60")
            a("v_lshrrev_b32 v7, 19, v7")
            a("v_mul_u32_u24 v5, 12, v7")
            a("v_sub_u32 v5, v6, v5")
            a("v_mul_lo_u32 v7, v7, s61")
            a("v_add_u32 v7, s59, v7")
            if jj:
                a("v_subrev_u32 v7, %d, v7" % (1024 * jj))
            a("v_lshl_add_u32 v%d, v5, 4, v7" % (vb + 4 + jj))
            a("v_xor_b32 v5, 2, v5")
            a("v_lshl_add_u32 v%d, v5, 4, v7" % (vb + 7 + jj))
        a("s_lshl_b32 s57, s50, 12")
        a("s_mul_i32 s58, s50, 3072")
        a("s_add_u32 s58, s58, 16384")
        a("s_add_u32 s59, s58, 12288")
        for st in (2, 3):
            b = st * STG
            a("s_mov_b32 s60, %d" % (128 * st))
            a("s_mov_b32 s61, %d" % (64 * 2752 * st))
            a("s_add_u32 m0, s57, %d" % b)
            a("s_nop 0")
            for jj in range(4):
                a("buffer_load_dwordx4 v%d, s[%d:%d], s60 offen offset:%d lds" % (vb + jj, sX, sX + 3, 1024 * jj))
            a("s_add_u32 m0, s58, %d" % b)
            a("s_nop 0")
            for jj in range(3):
                a("buffer_load_dwordx4 v%d, s[%d:%d], s61 offen offset:%d lds" % (vb + 4 + jj, sWG, sWG + 3, 1024 * jj))
            a("s_add_u32 m0, s59, %d" % b)
            a("s_nop 0")
            for jj in range(3):
                a("buffer_load_dwordx4 v%d, s[%d:%d], s61 offen offset:%d lds" % (vb + 7 + jj, sWU, sWU + 3, 1024 * jj))
    a("s_and_b32 s56, s50, 1")
    a("s_lshr_b32 s57, s50, 1")
    a("v_and_b32 v3, 31, v1")
    a("s_lshl_b32 s58, s56, 6")
    a("v_add_u32 v3, s58, v3")
    a("v_lshlrev_b32 v3, 7, v3")
    a("v_lshrrev_b32 v4, 5, v1")
    a("v_bfe_u32 v5, v1, 1, 3")
    a("v_xor_b32 v4, v4, v5")
    for s in range(4):
        a("v_xor_b32 v6, %d, v4" % (2 * s))
        a("v_lshl_add_u32 v%d, v6, 4, v3" % (vXa[0] + s))
        a("v_add_u32 v%d, %d, v%d" % (vXa[1] + s, 2 * STG, vXa[0] + s))
    a("v_bfe_u32 v3, v1, 4, 1")
    a("v_lshrrev_b32 v4, 5, v1")
    a("v_bfe_u32 v5, v1, 2, 2")
    a("v_lshl_add_u32 v4, v4, 3, v5")
    a("v_mul_u32_u24 v4, 192, v4")
    a("v_and_b32 v5, 3, v1")
    a("v_lshl_add_u32 v4, v5, 3, v4")
    a("v_mul_u32_u24 v5, 12288, v3")
    a("v_add_u32 v4, v4, v5")
    a("v_add_u32 v4, 16384, v4")
    a("s_mul_i32 s58, s57, 3")
    for fbk in range(3):
        a("s_add_u32 s59, s58, %d" % fbk)
        a("v_xor_b32 v5, s59, v3")
        a("v_lshl_add_u32 v%d, v5, 5, v4" % (vWa[0] + fbk))
        a("v_add_u32 v%d, %d, v%d" % (vWa[1] + fbk, 2 * STG, vWa[0] + fbk))
    a("s_waitcnt lgkmcnt(0)")
    srd(a, sH, 16, H_BYTES)
    srd(a, sDBG, 14, 256)
    a("s_lshl_b32 s58, s48, 2")
    a("s_lshl_b32 s59, s56, 1")
    a("s_add_u32 s58, s58, s59")
    a("s_mul_i32 s58, s58, 86")
    a("s_mul_i32 s59, s49, 6")
    a("s_mul_i32 s60, s57, 3")
    a("s_add_u32 s59, s59, s60")
    a("s_add_u32 s58, s58, s59")
    a("s_lshl_b32 s58, s58, 10")
    a("v_lshlrev_b32 v3, 4, v1")
    a("v_add_u32 v3, s58, v3")
    a("v_add_u32 v4, %d, v3" % (86 * 1024))
    for fbk in range(3):
        a("s_add_u32 s60, s59, %d" % fbk)
        a("s_cmp_ge_u32 s60, 86")
        a("s_cselect_b32 s%d, 0x40000000, %d" % (53 + fbk, 1024 * fbk))
    a("s_mov_b32 s61, 0xbfb8aa3b")

    def rd_x(st, s, fs, mbk):
        b = st % 4
        return lambda: a.lds("ds_read_b128 %s, v%d offset:%d" % (vr(FR[fs] + 4 * mbk, 4), vXa[b // 2] + s, (b % 2) * STG + 4096 * mbk), ("f", st, s, "x", mbk))

    def rd_w(st, s, fs, fbk, half):
        b = st % 4
        return lambda: a.lds("ds_read_b64_tr_b16 %s, v%d offset:%d" % (vr(FR[fs] + 8 + 4 * fbk + 2 * half, 2), vWa[b // 2] + fbk, (b % 2) * STG + 3072 * s + 768 * half), ("f", st, s, "w", fbk))

    def reads(st, s, fs):
        x = lambda m: rd_x(st, s, fs, m)
        w = lambda f, h: rd_w(st, s, fs, f, h)
        return [x(0), w(0, 0), w(0, 1), x(1), w(1, 0), w(1, 1), w(2, 0), w(2, 1)]

    def mfma(st, s, fs, fbk, mbk):
        f = FR[fs]
        tag = ("f", st, s)
        a.wait(lg=[tag + ("x", mbk), tag + ("w", fbk)])
        c = vr(acc(mbk, fbk), 16)
        if "fake16" in OPTS and st < NST - 1:
            for q in range(2):
                c = vr(acc(mbk, fbk) + 4 * q + 8 * (s & 1), 4)
                a("v_mfma_f32_16x16x32_bf16 %s, %s, %s, %s" % (c, vr(f + 8 + 4 * fbk, 4), vr(f + 4 * mbk, 4), "0" if (st == 0 and s < 2) else c))
                if q == 0 and mid:
                    mid.pop(0)()
            return
        a("v_mfma_f32_32x32x16_bf16 %s, %s, %s, %s" % (c, vr(f + 8 + 4 * fbk, 4), vr(f + 4 * mbk, 4), "0" if (st == 0 and s == 0) else c))

    mid = []

    def epi(fbk, mbk, t):
        c = acc(mbk, fbk)
        l = []
        for j in range(8):
            l.append(lambda j=j: a("v_mul_f32 v%d, s61, v%d" % (t + j, c + j)))
        for j in range(8):
            l.append(lambda j=j: a("v_exp_f32 v%d, v%d" % (t + j, t + j)))
        for j in range(8):
            l.append(lambda j=j: a("v_mul_f32 v%d, v%d, v%d" % (c + j, c + j, c + 8 + j)))
        for j in range(8):
            l.append(lambda j=j: a("v_add_f32 v%d, 1.0, v%d" % (t + j, t + j)))
        for j in range(8):
            l.append(lambda j=j: a("v_rcp_f32 v%d, v%d" % (t + j, t + j)))
        l.append(lambda: a("s_nop 0"))
        for j in range(8):
            l.append(lambda j=j: a("v_mul_f32 v%d, v%d, v%d" % (t + j, t + j, c + j)))
        for j in range(4):
            l.append(lambda j=j: a("v_cvt_pk_bf16_f32 v%d, v%d, v%d" % (t + 8 + j, t + 2 * j, t + 2 * j + 1)))
        l.append(lambda: a("buffer_store_dwordx4 %s, v%d, s[%d:%d], s%d offen%s" % (vr(t + 8, 4), 3 + mbk, sH, sH + 3, 53 + fbk, HST)))
        return l

    def epi_pk(fbk, mbk, t):
        c = acc(mbk, fbk)
        l = []
        for j in range(0, 8, 2):
            l.append(lambda j=j: a("v_pk_mul_f32 %s, %s, v[244:245]" % (vr(t + j, 2), vr(c + j, 2))))
        for j in range(8):
            l.append(lambda j=j: a("v_exp_f32 v%d, v%d" % (t + j, t + j)))
        for j in range(0, 8, 2):
            l.append(lambda j=j: a("v_pk_mul_f32 %s, %s, %s" % (vr(c + j, 2), vr(c + j, 2), vr(c + 8 + j, 2))))
        for j in range(0, 8, 2):
            l.append(lambda j=j: a("v_pk_add_f32 %s, %s, 1.0 op_sel_hi:[1,0]" % (vr(t + j, 2), vr(t + j, 2))))
        for j in range(8):
            l.append(lambda j=j: a("v_rcp_f32 v%d, v%d" % (t + j, t + j)))
        l.append(lambda: a("s_nop 0"))
        for j in range(0, 8, 2):
            l.append(lambda j=j: a("v_pk_mul_f32 %s, %s, %s" % (vr(t + j, 2), vr(t + j, 2), vr(c + j, 2))))
        for j in range(4):
            l.append(lambda j=j: a("v_cvt_pk_bf16_f32 v%d, v%d, v%d" % (t + 8 + j, t + 2 * j, t + 2 * j + 1)))
        l.append(lambda: a("buffer_store_dwordx4 %s, v%d, s[%d:%d], s%d offen%s" % (vr(t + 8, 4), 3 + mbk, sH, sH + 3, 53 + fbk, HST)))
        return l

    a("v_mov_b32 v244, s61")
    a("v_mov_b32 v245, s61")
    order = [(0, 0), (0, 1), (1, 0), (1, 1), (2, 0), (2, 1)]
    stamp(a, 1)
    a("s_barrier")
    stamp(a, 2)
    stamp(a, 10, True)
    for r in reads(0, 0, 0):
        r()
    fs = 0
    for st in range(NST - 1):
        NST_N = 4
        for o in OPTS:
            if o.startswith("nst"):
                NST_N = int(o[3:])
        if st == NST_N:
            a("s_cmp_lg_u32 s50, 0")
            a("s_cbranch_scc1 C_nn2")
            a("buffer_load_dwordx2 v[246:247], v248, s[%d:%d], 0 offen sc1" % (sDBG, sDBG + 3))
            a.label("C_nn2")
        for s in range(4):
            if s < 3:
                rd = reads(st, s + 1, fs ^ 1)
                sched = {0: rd[0:3], 1: rd[3:6], 2: rd[6:8]}
                if "fake16" in OPTS:
                    sched = {i: [rd[2 * i + 1]] for i in range(4)}
                    mid[:] = [rd[2 * i] for i in range(4)]
                for i, (fbk, mbk) in enumerate(order):
                    mfma(st, s, fs, fbk, mbk)
                    for r in sched.get(i, []):
                        r()
            else:
                rd = reads(st + 1, 0, fs ^ 1)
                for i, (fbk, mbk) in enumerate(order):
                    mfma(st, s, fs, fbk, mbk)
                    if i == 1:
                        a.wait(lg_all=True)
                        if "cdma" in OPTS and st in (1, 2):
                            a("s_waitcnt vmcnt(%d)" % (10 if st == 1 else 0))
                        if "bw" in OPTS:
                            a("s_memtime s[88:89]")
                            a("s_waitcnt lgkmcnt(0)")
                        a("s_barrier")
                        if "bw" in OPTS:
                            a("s_memtime s[90:91]")
                            a("s_waitcnt lgkmcnt(0)")
                            a("s_sub_u32 s88, s90, s88")
                            if st == 0:
                                a("s_mov_b32 s101, 0")
                                a("s_mov_b32 s3, 0")
                            if st < 4:
                                a("s_add_u32 s101, s101, s88")
                            else:
                                a("s_add_u32 s3, s3, s88")
                        for r in rd[0:3]:
                            r()
                    if i == 2:
                        for r in rd[3:6]:
                            r()
                    if i == 3:
                        for r in rd[6:8]:
                            r()
                    if st == NST - 2 and i >= 4:
                        sets = [fs ^ 1, fs, 2, 3]
                        ss = i - 3
                        if ss == 2:
                            rd_x(NST - 1, 2, sets[2], 0)(); rd_w(NST - 1, 2, sets[2], 0, 0)(); rd_w(NST - 1, 2, sets[2], 0, 1)()
                            rd_x(NST - 1, 3, sets[3], 0)(); rd_w(NST - 1, 3, sets[3], 0, 0)(); rd_w(NST - 1, 3, sets[3], 0, 1)()
            fs ^= 1
    st = NST - 1
    sets = [fs, fs ^ 1, 2, 3]
    pend = [rd_x(st, 1, sets[1], 0), rd_w(st, 1, sets[1], 0, 0), rd_w(st, 1, sets[1], 0, 1)]
    pend += [rd_x(st, s, sets[s], 1) for s in (1, 2, 3)]
    for f_ in (1, 2):
        for s in (1, 2, 3):
            pend += [rd_w(st, s, sets[s], f_, 0), rd_w(st, s, sets[s], f_, 1)]
    TMP = [8, 20]
    a("s_waitcnt vmcnt(0)")

    def tile_mfmas(ti):
        fbk, mbk = order[ti]
        return [(lambda s=s: mfma(st, s, sets[s], fbk, mbk)) for s in ([0, 2, 3, 1] if ti == 0 else range(4))]

    for ti in (0, 1):
        for m in tile_mfmas(ti):
            m()
            for _ in range(3):
                if pend:
                    pend.pop(0)()
    assert not pend
    a.wait(lg_all=True)
    a("s_barrier")
    for ti in range(6):
        fbk, mbk = order[ti]
        if ti + 2 < 6:
            ev = epi(fbk, mbk, TMP[ti % 2])
            ms = tile_mfmas(ti + 2)
            step = len(ev) // 4
            for k, th in enumerate(ev):
                if k % step == 0 and ms:
                    ms.pop(0)()
                th()
            assert not ms
            if ti + 2 == 5:
                stamp(a, 3)
                stamp(a, 11, True)
        else:
            for th in epi_pk(fbk, mbk, TMP[ti % 2]):
                th()
    stamp(a, 4)
    a("s_barrier")
    a("s_waitcnt vmcnt(0)")
    stamp(a, 8)
    a("s_barrier")
    stamp(a, 9)
    a("s_cmp_lg_u32 s50, 0")
    a("s_cbranch_scc1 C_p2b")
    getnonce(a, "a")
    a("s_lshl_b32 s58, s48, 8")
    a("s_lshl_b32 s59, s49, 3")
    a("s_add_u32 s58, s58, s59")
    a("s_add_u32 s58, s58, %d" % FLAG_OFF)
    a("v_mov_b32 v3, s58")
    a("s_mov_b64 exec, 1")
    a("buffer_store_dwordx2 v[246:247], v3, s[%d:%d], 0 offen sc1" % (sH, sH + 3))
    a("s_mov_b64 exec, -1")
    a("s_branch C_p2b")
    a.label("C_p2")
    a("s_waitcnt vmcnt(0) lgkmcnt(0)")
    srd(a, sH, 16, H_BYTES)
    a("s_barrier")
    a("s_cmp_lg_u32 s50, 0")
    a("s_cbranch_scc1 C_p2b")
    a("v_mov_b32 v246, 0")
    a("v_mov_b32 v247, 0")
    getnonce(a, "b")
    a.label("C_p2b")
    p2_setup(a)
    a("s_barrier")
    a("s_cmp_lg_u32 s50, 0")
    a("s_cbranch_scc1 P2_main")
    poll(a)
    a("s_branch P2_main")

    a.label("L_loader")
    a.vm = []
    a.lg = []
    vXo, vWgo, vWuo, vWd = 8, 12, 15, 18
    a("s_sub_u32 s56, s50, 4")
    a("v_lshrrev_b32 v3, 3, v1")
    a("v_and_b32 v4, 7, v1")
    a("v_lshrrev_b32 v5, 4, v1")
    a("s_lshl_b32 s58, s48, 7")
    a("s_lshl_b32 s59, s56, 5")
    a("s_add_u32 s58, s58, s59")
    a("v_add_u32 v6, s58, v3")
    a("v_lshlrev_b32 v6, 10, v6")
    for jj in range(4):
        a("v_add_u32 v7, %d, v5" % (4 * jj))
        a("v_and_b32 v7, 7, v7")
        a("v_xor_b32 v7, v7, v4")
        a("v_lshl_add_u32 v%d, v7, 4, v6" % (vXo + jj))
        if jj:
            a("v_add_u32 v%d, %d, v%d" % (vXo + jj, jj * (8192 - 1024), vXo + jj))
    a("s_mul_i32 s58, s56, 192")
    a("s_mul_i32 s59, s49, 192")
    a("s_mov_b32 s60, 43691")
    a("s_mov_b32 s61, 2752")
    for jj in range(3):
        a("v_add_u32 v6, s58, v1")
        if jj:
            a("v_add_u32 v6, %d, v6" % (64 * jj))
        a("v_mul_lo_u32 v7, v6, s60")
        a("v_lshrrev_b32 v7, 19, v7")
        a("v_mul_u32_u24 v19, 12, v7")
        a("v_sub_u32 v19, v6, v19")
        a("v_mul_lo_u32 v7, v7, s61")
        a("v_add_u32 v7, s59, v7")
        if jj:
            a("v_subrev_u32 v7, %d, v7" % (1024 * jj))
        a("v_lshl_add_u32 v%d, v19, 4, v7" % (vWgo + jj))
        a("v_xor_b32 v19, 2, v19")
        a("v_lshl_add_u32 v%d, v19, 4, v7" % (vWuo + jj))
    a("s_lshl_b32 s58, s56, 3")
    a("v_add_u32 v6, s58, v3")
    a("v_lshlrev_b32 v6, 10, v6")
    a("s_lshl_b32 s58, s52, 7")
    a("v_add_u32 v6, s58, v6")
    a("v_bfe_u32 v7, v1, 4, 1")
    a("v_lshlrev_b32 v7, 2, v7")
    a("v_xor_b32 v7, v7, v4")
    a("v_lshl_add_u32 v%d, v7, 4, v6" % vWd)
    a("s_lshl_b32 s57, s56, 12")
    a("s_mul_i32 s58, s56, 3072")
    a("s_add_u32 s58, s58, 16384")
    a("s_add_u32 s59, s58, 12288")
    if "rot" in OPTS:
        a("s_lshl_b32 s55, s49, 1")
        a("s_add_u32 s55, s55, s48")
        a("s_and_b32 s55, s55, 7")
    else:
        a("s_mov_b32 s55, 0")
    a("s_lshl_b32 s60, s55, 7")
    a("s_mul_i32 s61, s55, %d" % (64 * 2752))
    a("s_lshl_b32 s18, s56, 10")
    a("s_waitcnt lgkmcnt(0)")
    srd(a, sX, 4, X_BYTES)
    srd(a, sWG, 6, W_BYTES)
    srd(a, sWU, 8, W_BYTES)
    srd(a, sWD, 10, W_BYTES)
    srd(a, sH, 16, H_BYTES)

    def dma(st):
        if "nodma" in OPTS and st > 3:
            return
        b = (st % 4) * STG
        a("s_add_u32 m0, s57, %d" % b)
        a("s_nop 0")
        for jj in range(4):
            a.vmem("buffer_load_dwordx4 v%d, s[%d:%d], s60 offen offset:%d lds" % (vXo + jj, sX, sX + 3, 1024 * jj), ("d", st))
        a("s_add_u32 m0, s58, %d" % b)
        a("s_nop 0")
        for jj in range(3):
            a.vmem("buffer_load_dwordx4 v%d, s[%d:%d], s61 offen offset:%d lds" % (vWgo + jj, sWG, sWG + 3, 1024 * jj), ("d", st))
        a("s_add_u32 m0, s59, %d" % b)
        a("s_nop 0")
        for jj in range(3):
            a.vmem("buffer_load_dwordx4 v%d, s[%d:%d], s61 offen offset:%d lds" % (vWuo + jj, sWU, sWU + 3, 1024 * jj), ("d", st))
        a("s_add_u32 s55, s55, 1")
        a("s_and_b32 s55, s55, 7")
        a("s_lshl_b32 s60, s55, 7")
        a("s_mul_i32 s61, s55, %d" % (64 * 2752))

    def wd1(reg, t, slot):
        a("s_add_u32 m0, s18, %d" % (reg * STG + slot * 4096))
        a("s_mov_b32 s19, %d" % ((352 * reg + 32 * t) * 1024))
        a.vmem("buffer_load_dwordx4 v%d, s[%d:%d], s19 offen lds" % (vWd, sWD, sWD + 3), ("p", reg, t))

    def l2warm():
        a("s_lshr_b32 s19, s2, 3")
        a("s_lshl_b32 s19, s19, 2")
        a("s_add_u32 s19, s19, s56")
        a("v_lshlrev_b32 v20, 4, v1")
        a("s_mul_i32 s3, s19, 3")
        a("s_add_u32 s3, s3, 1056")
        a("s_lshl_b32 s3, s3, 10")
        for i in range(3):
            a.vmem("buffer_load_dwordx4 v[%d:%d], v20, s[%d:%d], s3 offen offset:%d" % (28 + 4 * i, 31 + 4 * i, sWD, sWD + 3, 1024 * i), "j")
        a("s_lshr_b32 s3, s19, 5")
        a("s_mul_i32 s3, s3, 352")
        a("s_and_b32 s19, s19, 31")
        a("s_add_u32 s3, s3, s19")
        a("s_lshl_b32 s3, s3, 10")
        a.vmem("buffer_load_dwordx4 v[40:43], v20, s[%d:%d], s3 offen" % (sWD, sWD + 3), "j")

    NPRE = 3
    for o in OPTS:
        if o.startswith("pre"):
            NPRE = int(o[3:])
    SUN = 10
    for o in OPTS:
        if o.startswith("sun"):
            SUN = int(o[3:])

    def wdreg(reg):
        wd1(reg, 10, 0)
        for t in range(1, 10):
            wd1(reg, t, t)

    rest = [(r, 10) for r in range(NPRE, 3)]
    for t in list(range(1, 10)) + [0]:
        for r in range(NPRE, 4):
            if t == 0 and r < 3:
                continue
            rest.append((r, t))

    def issue(lst):
        for r, t in lst:
            wd1(r, t, 0 if t == 10 else t)

    if "wfirst" in OPTS:
        a("s_barrier")
    a("s_cmp_ge_u32 s49, 15")
    a("s_cbranch_scc1 LD_nop1")
    stamp(a, 1)
    dma(0)
    dma(1)
    a.wait(vm=[("d", 0)])
    a("s_barrier")
    stamp(a, 2)
    if "cdma" in OPTS:
        a("s_add_u32 s55, s55, 2")
        a("s_lshl_b32 s60, s55, 7")
        a("s_mul_i32 s61, s55, %d" % (64 * 2752))
    else:
        dma(2)
        dma(3)
    for st in range(NST - 1):
        a.wait(vm=[("d", st + 1)])
        a("s_barrier")
        if st + 4 < NST:
            dma(st + 4)
            if st == 1:
                a("s_lshl_b32 s19, s2, 2")
                a("s_add_u32 s19, s19, s56")
                a("s_mul_i32 s3, s19, 1376")
                a("v_lshlrev_b32 v20, 4, v1")
                a("s_mov_b32 s19, 352")
                a("v_cmp_gt_u32 vcc, s19, v20")
                a.vmem("buffer_load_dwordx4 v[28:31], v20, s[%d:%d], s3 offen" % (sWD, sWD + 3), "j")
                a("s_and_saveexec_b64 s[62:63], vcc")
                a.vmem("buffer_load_dwordx4 v[32:35], v20, s[%d:%d], s3 offen offset:1024" % (sWD, sWD + 3), "j")
                a("s_mov_b64 exec, s[62:63]")
        elif st - 4 < NPRE:
            wdreg(st - 4)
    a("s_barrier")
    stamp(a, 3)
    a("s_barrier")
    issue(rest[:SUN])
    a.wait(vm=[("p", r, 10) for r in range(3)])
    a("s_branch LD_e")
    a.label("LD_nop1")
    a.vm = []
    for reg in range(NPRE):
        wdreg(reg)
    issue(rest[:SUN])
    a.wait(vm=[("p", r, 10) for r in range(3)])
    a.label("LD_e")
    a("s_barrier")
    stamp(a, 4)
    a.vm = ["old"] * 20
    issue(rest[SUN:])
    a.vm.append("last")
    a.lines.append("    ; marker")
    p2_setup(a)
    a("s_barrier")
    for reg in range(3):
        a("s_add_u32 m0, s18, %d" % (reg * STG))
        a("s_mov_b32 s19, %d" % (352 * reg * 1024))
        a.vmem("buffer_load_dwordx4 v%d, s[%d:%d], s19 offen lds" % (vWd, sWD, sWD + 3), "p0")
    a.wait(vm=["last"])
    stamp(a, 8)
    p2_main(a, a.vm)
    a.label("L_end")
    a("s_endpgm")
    return a.text()


HEADER = """; Kernarg layout for this problem (56 bytes, ptrs only, base s[0:1]):
; @launch grid=(256,1,1) block=(512,1,1) lds=163840
.amdgcn_target "amdgcn-amd-amdhsa--gfx950"
.text
.globl standalone__swiglu_ffn__prompt_kernel
.p2align 8
.type standalone__swiglu_ffn__prompt_kernel,@function
"""

KD = """.section .rodata,"a"
.p2align 6
.amdhsa_kernel standalone__swiglu_ffn__prompt_kernel
  .amdhsa_next_free_vgpr 256
  .amdhsa_next_free_sgpr 102
  .amdhsa_accum_offset 256
  .amdhsa_group_segment_fixed_size 0
  .amdhsa_kernarg_size 56
  .amdhsa_user_sgpr_count 2
  .amdhsa_user_sgpr_kernarg_segment_ptr 1
  .amdhsa_system_sgpr_workgroup_id_x 1
.end_amdhsa_kernel
"""


def main():
    out = HEADER + gen() + KD
    path = sys.argv[1] if len(sys.argv) > 1 else "standalone__swiglu_ffn__prompt.s"
    open(path, "w").write(out)


main()
```
